```python
import torch

def _softmax(x, axis=-1):
    return torch.softmax(x, dim=axis)
def _gelu(x):
    return torch.nn.functional.gelu(x, approximate="tanh")
def _silu(x):
    return torch.nn.functional.silu(x)
def _sigmoid(x):
    return torch.sigmoid(x)
def _layernorm(x, axis=-1, eps=1e-5):
    m = x.mean(dim=axis, keepdim=True)
    v = x.var(dim=axis, keepdim=True, unbiased=False)
    return (x - m) / torch.sqrt(v + eps)
def _scatter_add(tgt, idx, src, axis=0):
    return tgt.clone().index_add_(axis, idx, src)
def _segment_sum(src, seg, n):
    out = torch.zeros((n,) + src.shape[1:], dtype=src.dtype)
    return out.index_add_(0, seg, src)
def _pad(x, pw):
    flat = tuple(v for pair in reversed(pw) for v in pair)
    return torch.nn.functional.pad(x, flat)

kernel_name = 'standalone__structured_sparse_n_m__ragged'

def setup_inputs():

    _w = (lambda a: (lambda t: t.to(torch.bfloat16) if t.is_floating_point() else t)(torch.as_tensor(a)))
    B, S, D = 4, 4096, 512
    assert D % 4 == 0, "d_model must be divisible by M=4 for 2:4 sparsity"
    return {
        "x": _w((lambda *s: torch.randn(*s, dtype=torch.bfloat16) * 0.05)(B, S, D)),
        "w": _w((lambda *s: torch.randn(*s, dtype=torch.bfloat16) * 0.05)(D, D)),
        "b": _w((lambda *s: torch.randn(*s, dtype=torch.bfloat16) * 0.05)(D)),
    }

def reference(x, w, b):
    B, S, D = x.shape
    N, M = 2, 4
    G = D // M
    wg = w.reshape(G, M, D)
    mag = torch.abs(wg)
    order = torch.argsort(mag, 1)
    thr = (lambda x, i, axis: torch.take_along_dim(x, i, dim=axis))(mag, order[:, M - N:M - N + 1, :], 1)
    mask = (lambda x, dt: x.to(dt))(mag >= thr, w.dtype)
    wp = (wg * mask).reshape(D, D)
    return torch.einsum("bsd,df->bsf", x, wp) + b
```

```python
NAME = "standalone__structured_sparse_n_m__ragged"
class Asm:
    def __init__(self, grid, block, lds, stamp=False, waves=8):
        self.out = []; self.grid = grid; self.block = block; self.lds = lds
        self.STAMP = stamp; self.NST = 0; self.waves = waves
    def e(self, s): self.out.append("    " + s)
    def lab(self, s): self.out.append(s + ":")
    def c(self, s): self.out.append("    ; " + s)
    def srd(self, d, b, nbytes):
        e = self.e
        e("s_mov_b32 s%d, s%d" % (d, b))
        e("s_and_b32 s%d, s%d, 0xffff" % (d + 1, b + 1))
        e("s_mov_b32 s%d, 0x%x" % (d + 2, nbytes))
        e("s_mov_b32 s%d, 0x00020000" % (d + 3))
    def stamp(self, name=None):
        if not self.STAMP: return
        assert self.NST < 26
        if self.NST == 0: self.e("s_memrealtime s[46:47]")
        self.e("%s s[%d:%d]" % ("s_memrealtime" if getattr(self, "REAL", False) else "s_memtime", 50 + 2 * self.NST, 51 + 2 * self.NST))
        self.NST += 1
    def stamp_dump(self, s_wave, srd=8):
        if not self.STAMP: return
        e = self.e
        e("s_memrealtime s[48:49]")
        e("s_waitcnt lgkmcnt(0)")
        e("s_load_dwordx2 s[4:5], s[0:1], 40")
        e("s_waitcnt lgkmcnt(0)")
        self.srd(srd, 4, 1 << 24)
        e("s_mul_i32 s6, s2, %d" % self.waves)
        e("s_add_u32 s6, s6, s%d" % s_wave)
        e("s_lshl_b32 s6, s6, 8")
        e("v_mov_b32 v1, 0")
        e("s_getreg_b32 s44, hwreg(HW_REG_XCC_ID)")
        e("s_getreg_b32 s45, hwreg(HW_REG_HW_ID)")
        n = (3 + self.NST + 1) // 2
        for i in range(n):
            for j in range(4):
                if 44 + 4 * i + j < 102: e("v_mov_b32 v%d, s%d" % (4 + j, 44 + 4 * i + j))
            e("buffer_store_dwordx4 v[4:7], v1, s[%d:%d], s6 offen offset:%d" % (srd, srd + 3, 16 * i))
            e("s_nop 1")
    def text(self, vgpr=256, sgpr=96, accum=None):
        if accum is None: accum = min(256, (vgpr + 3) // 4 * 4)
        hdr = """; Kernarg layout for this problem (48 bytes, ptrs only, base s[0:1]):
;   offset   0: d_in[0] x  shape=(4, 4096, 512) dtype=bfloat16 strides=(4194304, 1024, 2) contiguous=True
;   offset   8: d_in[1] w  shape=(512, 512) dtype=bfloat16 strides=(1024, 2) contiguous=True
;   offset  16: d_in[2] b  shape=(512,) dtype=bfloat16 strides=(2,) contiguous=True
;   offset  24: d_out     shape=(4, 4096, 512) dtype=bfloat16 (2 bytes/elem)
;   offset  32: d_debug   256 bytes
;   offset  40: d_ws      268435456 bytes workspace
; @launch grid=(%d,1,1) block=(%d,1,1) lds=%d
.amdgcn_target "amdgcn-amd-amdhsa--gfx950"
.text
.globl %s_kernel
.p2align 8
.type %s_kernel,@function
%s_kernel:""" % (self.grid, self.block, self.lds, NAME, NAME, NAME)
        ftr = """.section .rodata,"a"
.p2align 6
.amdhsa_kernel %s_kernel
  .amdhsa_next_free_vgpr %d
  .amdhsa_next_free_sgpr %d
  .amdhsa_accum_offset %d
  .amdhsa_group_segment_fixed_size 0
  .amdhsa_kernarg_size 48
  .amdhsa_user_sgpr_count 2
  .amdhsa_user_sgpr_kernarg_segment_ptr 1
  .amdhsa_system_sgpr_workgroup_id_x 1
.end_amdhsa_kernel
""" % (NAME, vgpr, sgpr, accum)
        return hdr + "\n" + "\n".join(self.out) + "\n" + ftr
```

```python
import sys
from common import *

opts = dict(stamp=0, lag=5, st="nt", xf="", prio=1, aown="01", touch=1, ctouch=1, pbar=1, vpos=24, rpos=3, hpos=3, cpos=4, pre=30, bsplit=56)
for a in sys.argv[1:]:
    k, v = a.split("=")
    assert k in opts, k
    opts[k] = int(v) if (v.lstrip("-").isdigit() and k != "aown") else v
STAMP = opts["stamp"]; LAG = opts["lag"]
STF = opts["st"].replace("_", " ") if opts["st"] != "none" else ""
XF = opts["xf"].replace("_", " ")
AOWN = [int(ch) for ch in opts["aown"]]
assert 0 in AOWN and 1 in AOWN
VPOS, RPOS, HPOS, CPOS = opts["vpos"], opts["rpos"], opts["hpos"], opts["cpos"]

A = Asm(256, 512, 163840, stamp=bool(STAMP), waves=8)
e = A.e

class Cnt:
    def reset(self): self.vm = 0; self.lg = 0; self.vm_done = 0; self.lg_done = 0
C = Cnt(); C.reset()
def vmem(s):
    e(s); C.vm += 1; return C.vm
def lds(s):
    e(s); C.lg += 1; return C.lg
def wait(vm=None, lg=None):
    parts = []
    if vm is not None and vm > C.vm_done:
        n = C.vm - vm
        assert n <= 63
        parts.append("vmcnt(%d)" % n); C.vm_done = vm
    if lg is not None and lg > C.lg_done:
        n = min(C.lg - lg, 15)
        parts.append("lgkmcnt(%d)" % n); C.lg_done = C.lg - n
    if parts: e("s_waitcnt " + " ".join(parts))
bars = {"A": [], "B": []}
cur = ["A"]
def barrier(name):
    bars[cur[0]].append(name)
    if STAMP == 2 or (STAMP == 1 and name in ("V0", "V1", "V2", "V3", "H3", "H5", "H7")): A.stamp()
    e("s_barrier    ; " + name)
def merge(ops, thunks):
    n = len(ops); m = len(thunks); k = 0
    for i, o in enumerate(ops):
        while k < m and k * n <= i * m: thunks[k](); k += 1
        e(o)
    while k < m: thunks[k](); k += 1

SX, SW, SB, SO = 8, 12, 16, 20
S_WAVE, S_NQ, S_MH, S_M0B, S_N4B, S_LB, S_T0, S_T1, S_T2, S_XS = 24, 25, 26, 27, 28, 29, 30, 31, 32, 33
S_SOFF = 34
V_L, V_WOFF, V_C8 = 1, 2, 3
V_WW = 4
V_XOFF = 8
V_TR = 9; V_EW = 10
V_TCH = 12
V_T = 16
V_XA = 32
V_XF = 40
NXF = 6
V_ACC = [64, 80, 96, 112]
V_W = 128
RAWA = [192, 208, 224, 240]
V_BIAS = 32
V_E = 40
V_ER = 56; V_OOFF = 58; V_BOFF = 59
SLOT = [0, 32768, 65536, 98304, 131072]
XSLOT = [0, 1, 2, 0, 1, 2, 4, 0]
assert LAG <= NXF - 1

soff_rr = [0]
def soff():
    r = S_SOFF + soff_rr[0]; soff_rr[0] = (soff_rr[0] + 1) % 6; return r

def prune_ops(raw):
    ops = []
    for dp in range(2):
        seqs = []
        for z in range(2):
            d = 2 * dp + z
            a = [raw + 4 * i + d for i in range(4)]
            g = [V_T + 8 * z + i for i in range(4)]
            h1, l1, h2, l2 = [V_T + 8 * z + 4 + i for i in range(4)]
            s = []
            for i in range(4): s.append("v_or_b32 v%d, v%d, v%d" % (g[i], V_C8, a[i]))
            s.append("v_pk_max_u16 v%d, v%d, v%d" % (h1, g[0], g[1]))
            s.append("v_pk_min_u16 v%d, v%d, v%d" % (l1, g[0], g[1]))
            s.append("v_pk_max_u16 v%d, v%d, v%d" % (h2, g[2], g[3]))
            s.append("v_pk_min_u16 v%d, v%d, v%d" % (l2, g[2], g[3]))
            s.append("v_pk_min_u16 v%d, v%d, v%d" % (h1, h1, h2))
            s.append("v_pk_max_u16 v%d, v%d, v%d" % (l1, l1, l2))
            s.append("v_pk_max_u16 v%d, v%d, v%d" % (h1, h1, l1))
            s.append("v_xor_b32 v%d, v%d, v%d" % (h1, V_C8, h1))
            for i in range(4): s.append("v_sub_u32 v%d, v%d, v%d" % (g[i], g[i], h1))
            for i in range(4): s.append("v_pk_ashrrev_i16 v%d, 15, v%d op_sel_hi:[0,1]" % (g[i], g[i]))
            for i in range(4): s.append("v_and_b32 v%d, v%d, v%d" % (a[i], g[i], a[i]))
            seqs.append(s)
        for x, y in zip(*seqs): ops += [x, y]
    return ops
vg = {}
def wload1(key, raw, c, hi, i):
    off = c * 131072 + hi * 65536
    if off == 0: so = "0"
    else:
        s = soff(); e("s_mov_b32 s%d, 0x%x" % (s, off)); so = "s%d" % s
    r = raw + 4 * i
    vg[key] = vmem("buffer_load_dwordx4 v[%d:%d], v%d, s[%d:%d], %s offen offset:%d" % (r, r + 3, V_WOFF, SW, SW + 3, so, i * 1024))
def wload_t(key, raw, c, hi): return [lambda i=i: wload1(key, raw, c, hi, i) for i in range(4)]
def wwrite1(raw, c, hi, i):
    r = raw + 4 * i
    return lds("ds_write_b128 v%d, v[%d:%d] offset:%d" % (V_WW + i, r, r + 3, i * 256 + hi * 16384 + (c & 1) * 32768))
def wwrite(raw, c, hi):
    for i in range(4): w = wwrite1(raw, c, hi, i)
    return w
vx = {}
def xdma1(p, j, a):
    aa = a or 0
    s = soff()
    e("s_add_u32 m0, s%d, 0x%x" % (S_LB, SLOT[XSLOT[p]] + j * 8192 + aa * 4096))
    if p < 4: off = j * 32768 + aa * 16384 + p * 256
    else: off = p * 32768 + aa * 16384 + j * 256
    e("s_add_u32 s%d, s%d, 0x%x" % (s, S_XS, off))
    vx[p] = vmem("buffer_load_dwordx4 v%d, s[%d:%d], s%d offen %s lds" % (V_XOFF, SX, SX + 3, s, XF))
def xdma_own_t(p): return [lambda j=j: xdma1(p, j, None) for j in range(4)]
def xdma_t(p): return [lambda j=j, a=a: xdma1(p, j, a) for j in range(4) for a in range(2)]
def run(ts):
    for t in ts: t()

e("s_cmp_ge_u32 s2, 256")
e("s_cbranch_scc1 L_end")
A.stamp()
e("s_load_dwordx4 s[4:7], s[0:1], 0")
e("s_load_dwordx4 s[40:43], s[0:1], 16")
if opts["ctouch"]:
    e("s_getpc_b64 s[%d:%d]" % (S_T0, S_T1))
    A.lab("L_pc")
    e("v_lshlrev_b32 v14, 7, v0")
    e("v_min_u32 v14, L_end-L_pc, v14")
    e("v_mov_b32 v15, s%d" % S_T1)
    e("v_add_co_u32 v14, vcc, s%d, v14" % S_T0)
    e("v_lshrrev_b32 v%d, 6, v0" % V_T)
    e("v_and_b32 v%d, 63, v0" % V_L)
    e("v_addc_co_u32 v15, vcc, 0, v15, vcc")
    vmem("global_load_dword v13, v[14:15], off")
else:
    e("v_lshrrev_b32 v%d, 6, v0" % V_T)
    e("v_and_b32 v%d, 63, v0" % V_L)
e("v_readfirstlane_b32 s%d, v%d" % (S_WAVE, V_T))
e("s_and_b32 s%d, s2, 7" % S_T0)
e("s_lshr_b32 s%d, s2, 3" % S_T1)
e("s_and_b32 s%d, s%d, 3" % (S_N4B, S_T1))
e("s_lshr_b32 s%d, s%d, 2" % (S_T1, S_T1))
e("s_lshl_b32 s%d, s%d, 3" % (S_T1, S_T1))
e("s_add_u32 s%d, s%d, s%d" % (S_T1, S_T1, S_T0))
e("s_lshl_b32 s%d, s%d, 18" % (S_M0B, S_T1))
e("s_lshl_b32 s%d, s%d, 8" % (S_N4B, S_N4B))
e("s_and_b32 s%d, s%d, 3" % (S_NQ, S_WAVE))
e("s_lshr_b32 s%d, s%d, 2" % (S_MH, S_WAVE))
t0, t1, t2, t3, t4, t5 = [V_T + i for i in range(6)]
e("v_and_b32 v%d, 15, v%d" % (t0, V_L))
e("v_lshrrev_b32 v%d, 4, v%d" % (t1, V_L))
e("s_lshl_b32 s%d, s%d, 14" % (S_T0, S_WAVE))
e("s_add_u32 s%d, s%d, s%d" % (S_T0, S_T0, S_N4B))
e("v_lshlrev_b32 v%d, 12, v%d" % (V_WOFF, t1))
e("v_lshl_add_u32 v%d, v%d, 4, v%d" % (V_WOFF, t0, V_WOFF))
e("v_add_u32 v%d, s%d, v%d" % (V_WOFF, S_T0, V_WOFF))
e("s_lshl_b32 s%d, s%d, 2" % (S_T0, S_NQ))
e("v_add_u32 v%d, s%d, v%d" % (t2, S_T0, t1))
e("v_xor_b32 v%d, v%d, v%d" % (t3, t0, t2))
e("v_lshlrev_b32 v%d, 4, v%d" % (t3, t3))
e("v_lshl_add_u32 v%d, v%d, 10, v%d" % (V_XOFF, t2, t3))
e("s_lshl_b32 s%d, s%d, 10" % (S_LB, S_WAVE))
e("s_lshl_b32 s%d, s%d, 14" % (S_XS, S_MH))
e("s_add_u32 s%d, s%d, s%d" % (S_XS, S_XS, S_M0B))
e("s_mov_b32 s%d, 0x%x" % (SW + 2, 512 * 1024))
e("s_mov_b32 s%d, 0x00020000" % (SW + 3))
e("s_mov_b32 s%d, 0x%x" % (SX + 2, 16384 * 1024))
e("s_mov_b32 s%d, 0x00020000" % (SX + 3))
e("s_waitcnt lgkmcnt(0)")
e("s_mov_b32 s%d, s6" % SW)
e("s_and_b32 s%d, s7, 0xffff" % (SW + 1))
A.stamp()
run(wload_t("g0", RAWA[0], 0, 0))
e("s_mov_b32 s%d, s4" % SX)
e("s_and_b32 s%d, s5, 0xffff" % (SX + 1))
if opts["pbar"]: e("s_barrier")
run(xdma_own_t(0))
A.srd(SB, 40, 1024)
A.srd(SO, 42, 16384 * 1024)
e("s_lshl_b32 s%d, s%d, 12" % (S_T1, S_WAVE))
e("s_add_u32 s%d, s%d, 0x%x" % (S_T1, S_T1, SLOT[3]))
e("v_lshlrev_b32 v%d, 10, v%d" % (t3, t1))
e("v_lshl_add_u32 v%d, v%d, 4, v%d" % (t3, t0, t3))
e("v_add_u32 v%d, s%d, v%d" % (V_WW, S_T1, t3))
for i in range(1, 4):
    e("v_xor_b32 v%d, %d, v%d" % (V_WW + i, 64 * i, V_WW))
e("v_mov_b32 v%d, 0x80008000" % V_C8)
e("v_lshrrev_b32 v%d, 5, v%d" % (t4, V_L))
e("v_and_b32 v%d, 31, v%d" % (t2, V_L))
e("s_lshl_b32 s%d, s%d, 2" % (S_T0, S_NQ))
e("v_lshlrev_b32 v%d, 1, v%d" % (t5, t4))
e("v_add_u32 v%d, s%d, v%d" % (t5, S_T0, t5))
e("v_and_b32 v%d, 7, v%d" % (t3, t2))
e("v_xor_b32 v%d, v%d, v%d" % (t3, t3, t5))
e("v_lshlrev_b32 v%d, 4, v%d" % (t3, t3))
e("v_lshl_add_u32 v%d, v%d, 8, v%d" % (V_EW, t2, t3))
e("v_add_u32 v%d, 0x%x, v%d" % (V_EW, SLOT[3], V_EW))
e("v_xor_b32 v%d, 16, v%d" % (V_EW + 1, V_EW))
e("v_xor_b32 v%d, v%d, v%d" % (t3, t4, t0))
e("v_lshlrev_b32 v%d, 4, v%d" % (t3, t3))
e("v_lshl_add_u32 v%d, v%d, 8, v%d" % (V_XA, t2, t3))
for ks in range(1, 8):
    e("v_xor_b32 v%d, %d, v%d" % (V_XA + ks, 32 * ks, V_XA))
e("v_lshrrev_b32 v%d, 2, v%d" % (t2, V_L))
e("v_and_b32 v%d, 3, v%d" % (t2, t2))
e("v_lshl_add_u32 v%d, v%d, 3, v%d" % (t3, t4, t2))
e("v_lshlrev_b32 v%d, 8, v%d" % (V_TR, t3))
e("v_xor_b32 v%d, s%d, v%d" % (t3, S_NQ, t2))
e("v_lshl_add_u32 v%d, v%d, 6, v%d" % (V_TR, t3, V_TR))
e("v_and_b32 v%d, 1, v%d" % (t3, V_L))
e("v_lshl_add_u32 v%d, v%d, 5, v%d" % (V_TR, t3, V_TR))
e("v_and_b32 v%d, 1, v%d" % (t3, t1))
e("v_lshl_add_u32 v%d, v%d, 4, v%d" % (V_TR, t3, V_TR))
e("v_lshrrev_b32 v%d, 1, v%d" % (t3, V_L))
e("v_and_b32 v%d, 1, v%d" % (t3, t3))
e("v_lshl_add_u32 v%d, v%d, 3, v%d" % (V_TR, t3, V_TR))
e("v_add_u32 v%d, 0x%x, v%d" % (V_TR, SLOT[3], V_TR))
e("v_lshlrev_b32 v%d, 7, v%d" % (V_TCH, V_L))
e("s_lshl_b32 s%d, s%d, 15" % (S_T0, S_NQ))
e("s_lshl_b32 s%d, s%d, 5" % (S_T1, S_N4B))
e("s_add_u32 s%d, s%d, s%d" % (S_T0, S_T0, S_T1))
e("s_add_u32 s%d, s%d, s%d" % (S_T0, S_T0, S_M0B))
e("s_add_u32 s%d, s%d, 0x20000" % (S_T2, S_T0))
e("v_lshlrev_b32 v%d, 4, v%d" % (V_BOFF, t0))
e("v_add_u32 v%d, s%d, v%d" % (V_BOFF, S_N4B, V_BOFF))
e("s_lshl_b32 s%d, s%d, 3" % (S_T0, S_NQ))
e("v_add_u32 v%d, s%d, v%d" % (t2, S_T0, t1))
e("v_lshl_add_u32 v%d, v%d, 10, v%d" % (V_OOFF, t2, V_BOFF))
e("v_xor_b32 v%d, v%d, v%d" % (t3, t0, t1))
e("v_lshlrev_b32 v%d, 4, v%d" % (t3, t3))
e("v_lshl_add_u32 v%d, v%d, 8, v%d" % (V_ER, t2, t3))
e("v_add_u32 v%d, 0x%x, v%d" % (V_ER, SLOT[3], V_ER))
e("v_xor_b32 v%d, 64, v%d" % (V_ER + 1, V_ER))
wait(vm=vg["g0"])
A.stamp()
merge(prune_ops(RAWA[0]), wload_t("g1", RAWA[1], 1, 0) + xdma_own_t(1))
w0 = wwrite(RAWA[0], 0, 0)
e("s_cmp_lg_u32 s%d, 0" % S_MH)
e("s_cbranch_scc1 L_B")
nst0 = A.NST
fork = (dict(C.__dict__), dict(vg), dict(vx), soff_rr[0])

cur[0] = "A"
if opts["prio"]: e("s_setprio %d" % opts["prio"])
for c in (2, 3):
    if c in AOWN: run(wload_t("a%d" % c, RAWA[c], c, 0))
vg["a1"] = vg["g1"]
if opts["touch"]:
    vmem("buffer_load_dword v%d, v%d, s[%d:%d], s%d offen" % (V_TCH + 1, V_TCH, SX, SX + 3, S_T2))
wait(lg=w0, vm=vx[0])
barrier("V0")

seq = []
for p in range(3):
    for ks in range(8):
        for t in range(4): seq.append((t, 8 * p + ks, p, t))
for t in range(4):
    for ks in range(8): seq.append((t, 24 + ks, 3, t))
for p in range(4, 8):
    for kk in range(32): seq.append((p, kk, p, kk >> 3))
N = len(seq)
last_use = {}
for n, (t, kk, p, j) in enumerate(seq): last_use[(p, kk & 7)] = n
lg_w = {}; lg_x = {}; mf_pos = {}
def trread(c, ks, q):
    r = V_W + 32 * c + 4 * ks + 2 * q
    lg_w[8 * c + ks] = lds("ds_read_b64_tr_b16 v[%d:%d], v%d offset:%d" % (r, r + 1, V_TR, ks * 4096 + q * 1024 + (c & 1) * 32768))
def xread(n):
    t, kk, p, j = seq[n]
    r = V_XF + 4 * (n % NXF)
    lg_x[n] = lds("ds_read_b128 v[%d:%d], v%d offset:%d" % (r, r + 3, V_XA + (kk & 7), j * 8192))
    if last_use[(p, kk & 7)] == n and p < 7:
        d = SLOT[XSLOT[p + 1]] - SLOT[XSLOT[p]]
        if d >= 0: e("v_add_u32 v%d, 0x%x, v%d" % (V_XA + (kk & 7), d, V_XA + (kk & 7)))
        else: e("v_subrev_u32 v%d, 0x%x, v%d" % (V_XA + (kk & 7), -d, V_XA + (kk & 7)))
def mfma(n):
    t, kk, p, j = seq[n]
    wait(lg=max(lg_x[n], lg_w[kk]))
    d = V_ACC[t & 3]; w_ = V_W + 4 * kk; x = V_XF + 4 * (n % NXF)
    cc = "0" if kk == 0 else "v[%d:%d]" % (d, d + 15)
    e("v_mfma_f32_32x32x16_bf16 v[%d:%d], v[%d:%d], v[%d:%d], %s" % (d, d + 15, w_, w_ + 3, x, x + 3, cc))
    mf_pos[t] = len(A.out) - 1
fill = {n: [] for n in range(-1, N)}
def at(n, f): fill[n].append(f)
st = {}
for c in range(1, 4):
    n0 = 32 * (c - 1) + VPOS
    rate = 2 if c == 3 else 1
    k = 0
    for ks in range(8):
        for q in range(2):
            at(n0 + 1 + k // rate, lambda c=c, ks=ks, q=q: trread(c, ks, q)); k += 1
for c in range(1, 4):
    if c not in AOWN: continue
    ops = prune_ops(RAWA[c])
    lo = -1 if c == 1 else 32 * (c - 2) + VPOS + 1
    hi = 32 * (c - 1) + VPOS - 6
    at(lo, lambda c=c: wait(vm=vg["a%d" % c]))
    if c == 1:
        pre = opts["pre"]
        for o in ops[:pre]: at(-1, lambda o=o: e(o))
        ops = ops[pre:]; lo = 0
    ns = hi - lo
    for k, o in enumerate(ops): at(lo + k * ns // len(ops), lambda o=o: e(o))
    for i in range(4):
        at(hi + i // 2, lambda c=c, i=i: st.__setitem__("ww", wwrite1(RAWA[c], c, 0, i)))
tile_end = {}
for n, (t, kk, p, j) in enumerate(seq):
    if kk == 31: tile_end[t] = n
def cvt(t, j):
    d = V_ACC[t & 3]
    gap = len(A.out) - mf_pos[t] - 1
    if gap < 12: e("s_nop %d" % (11 - gap)); mf_pos[t] -= 12
    e("v_cvt_pk_bf16_f32 v%d, v%d, v%d" % (V_T + j, d + 2 * j, d + 2 * j + 1))
def stw(t, q):
    st["sw"] = lds("ds_write_b128 v%d, v[%d:%d] offset:%d" % (V_EW + q, V_T + 4 * q, V_T + 4 * q + 3, (t & 3) * 8192))
def bar_after(name, key=None):
    wait(lg=st.get(key), vm=vx[1] if name == "V1" else None)
    barrier(name)
barpos = []
for t in range(7):
    n = tile_end[t]
    for j in range(8): at(n + CPOS + j // 4, lambda t=t, j=j: cvt(t, j))
    at(n + CPOS, lambda t=t: stw(t, 0))
    at(n + CPOS + 1, lambda t=t: stw(t, 1))
    barpos.append((n + CPOS + 1 + HPOS, "H%d" % t, "sw"))
for c in range(1, 4): barpos.append((32 * (c - 1) + VPOS, "V%d" % c, "ww"))
barpos.append((32 * 4 + VPOS, "V5", None))
for p in range(1, 4): barpos.append((32 * p + RPOS, "R%d" % p, None))
for n, name, key in sorted(barpos): at(n, lambda name=name, key=key: bar_after(name, key))

k = 0
for ks in range(8):
    for q in range(2):
        if ks < 2: trread(0, ks, q)
        else: at(k // 2, lambda ks=ks, q=q: trread(0, ks, q)); k += 1
    if ks == 0:
        for n in range(4): xread(n)
for n in range(4, LAG): xread(n)
for f in fill[-1]: f()
for n in range(N):
    if n + LAG < N: xread(n + LAG)
    mfma(n)
    for f in fill[n]: f()
for j in range(4): cvt(7, j)
stw(7, 0)
for j in range(4, 8): cvt(7, j)
stw(7, 1)
bar_after("H7", "sw")
A.stamp()
if STAMP:
    e("s_setprio 0")
    e("s_sleep 40")
    e("s_waitcnt vmcnt(0)")
    A.stamp()
    A.stamp_dump(S_WAVE)
e("s_endpgm")

A.lab("L_B")
cur[0] = "B"; A.NST = nst0
C.__dict__.update(fork[0]); vg.clear(); vg.update(fork[1]); vx.clear(); vx.update(fork[2]); soff_rr[0] = fork[3]
e("v_subrev_u32 v%d, 0x10000, v%d" % (V_WOFF, V_WOFF))
e("s_sub_u32 s%d, s%d, 0x1000" % (S_LB, S_LB))
e("s_mov_b32 s%d, s%d" % (S_XS, S_M0B))
wait(lg=w0)
for i in range(4): e("v_subrev_u32 v%d, 0x4000, v%d" % (V_WW + i, V_WW + i))
bg = []
for c in (2, 3):
    if c not in AOWN: bg.append((c, 0))
    bg.append((c, 1))
RAWB = {g: 128 + 16 * i for i, g in enumerate(bg)}
def bload_t(g): return wload_t(g, RAWB[g], g[0], g[1])
def chunk_g(c): return [g for g in bg if g[0] == c]
wait(vm=vx[0])
barrier("V0")
x2 = xdma_t(2)
wait(vm=vg["g1"])
merge(prune_ops(RAWA[1]), sum([bload_t(g) for g in chunk_g(2)], []) + x2[:4])
w = wwrite(RAWA[1], 1, 1)
run(x2[4:])
wait(lg=w, vm=vx[1])
barrier("V1")
BS = opts["bsplit"]
st_b = {}
def bias_load(): st_b["v"] = vmem("buffer_load_dwordx4 v[%d:%d], v%d, s[%d:%d], 0 offen" % (V_E, V_E + 3, V_BOFF, SB, SB + 3))
for c in (2, 3):
    gs = chunk_g(c)
    nxt = sum([bload_t(g) for g in chunk_g(3)], []) if c == 2 else [bias_load]
    ops0 = prune_ops(RAWB[gs[0]])
    wait(vm=vg[gs[0]])
    merge(ops0[:BS], nxt[:4])
    barrier("R%d" % (c - 1))
    xs = nxt[4:] + xdma_t(c + 1)
    if len(gs) > 1:
        k = len(xs) * (96 - BS) // (192 - BS)
        merge(ops0[BS:], xs[:k])
        w = wwrite(RAWB[gs[0]], *gs[0])
        wait(vm=vg[gs[1]])
        merge(prune_ops(RAWB[gs[1]]), xs[k:])
        w = wwrite(RAWB[gs[1]], *gs[1])
    else:
        merge(ops0[BS:], xs[:4])
        w = wwrite(RAWB[gs[0]], *gs[0])
        run(xs[4:])
    wait(lg=w, vm=vx[c])
    barrier("V%d" % c)
wait(vm=st_b["v"])
for j in range(4):
    e("v_lshlrev_b32 v%d, 16, v%d" % (V_BIAS + 2 * j, V_E + j))
    e("v_and_b32 v%d, 0xffff0000, v%d" % (V_BIAS + 2 * j + 1, V_E + j))
barrier("R3")
run(xdma_t(5))
def out_tile(t, thunks=[]):
    base = V_E + 8 * (t & 1)
    r = [lds("ds_read_b128 v[%d:%d], v%d offset:%d" % (base + 4 * u, base + 4 * u + 3, V_ER + u, (t & 3) * 8192 + u * 1024)) for u in range(2)]
    for u in range(2):
        h = len(thunks) // 2
        run(thunks[:h] if u == 0 else thunks[h:])
        s = soff()
        e("s_add_u32 s%d, s%d, 0x%x" % (s, S_M0B, t * 32768 + u * 4096))
        wait(lg=r[u])
        for j in range(4):
            v = base + 4 * u + j
            e("v_lshlrev_b32 v%d, 16, v%d" % (V_T + 2 * j, v))
            e("v_and_b32 v%d, 0xffff0000, v%d" % (V_T + 2 * j + 1, v))
        for j in range(8):
            e("v_add_f32 v%d, v%d, v%d" % (V_T + j, V_T + j, V_BIAS + j))
        for j in range(4):
            e("v_cvt_pk_bf16_f32 v%d, v%d, v%d" % (base + 4 * u + j, V_T + 2 * j, V_T + 2 * j + 1))
        vmem("buffer_store_dwordx4 v[%d:%d], v%d, s[%d:%d], s%d offen %s" % (base + 4 * u, base + 4 * u + 3, V_OOFF, SO, SO + 3, s, STF))
x6 = xdma_t(6)
barrier("H0")
out_tile(0, x6[0:2])
wait(vm=vx[4])
barrier("H1")
out_tile(1, x6[2:4])
barrier("H2")
out_tile(2, x6[4:6])
barrier("H3")
out_tile(3, x6[6:8])
run(xdma_t(7))
wait(vm=vx[5])
barrier("V5")
wait(vm=vx[6])
barrier("H4")
out_tile(4)
wait(vm=vx[7])
barrier("H5")
out_tile(5)
barrier("H6")
out_tile(6)
barrier("H7")
out_tile(7)
A.stamp()
if STAMP:
    e("s_waitcnt vmcnt(0)")
    A.stamp()
    A.stamp_dump(S_WAVE)
A.lab("L_end")
e("s_endpgm")
assert bars["A"] == bars["B"], (bars["A"], bars["B"])
sys.stderr.write("barriers: %s ; stamps %d\n" % (" ".join(bars["A"]), A.NST))
print(A.text(vgpr=256, sgpr=102 if STAMP else 48))
```

```python
import sys
from common import *

opts = dict(stamp=0, lag=6, nxf=8, wstep=2, st="nt", xf="", ctouch=1, novalu=0, nomfma=0, novmem=0, real=0,
            uo="01234567,45670123,01234567,45670123", cpos=3, krot=0, sdel=90, nost=0, noepi=0, nodma=0, nobar=0, stmid=1,
            ci="g0+bar+g1", bi="none", a0="g2+g3", b0="g2+g3", a1="U0h0", b1="U0h1", a2="none", b2="U1h1", pa=1, pb=2, dpos=36, bcut=48, dstep=2, bpace=3, s1="none", s2="U1h0", b3="U2", b4="none", pm=2, pw=3, pbm=0, sstep=2)
for a in sys.argv[1:]:
    k, v = a.split("=")
    assert k in opts, k
    opts[k] = int(v) if v.lstrip("-").isdigit() else v
STAMP = opts["stamp"]; LAG = opts["lag"]; NXF = opts["nxf"]; WSTEP = opts["wstep"]
STF = opts["st"].replace("_", " ") if opts["st"] != "none" else ""
XF = opts["xf"].replace("_", " ")
CPOS = opts["cpos"]
UO = [[int(c) for c in s] for s in opts["uo"].split(",")]
assert all(sorted(u) == list(range(8)) for u in UO) and len(UO) == 4

A = Asm(256, 512, 163840, stamp=bool(STAMP), waves=8)
e = A.e
A.REAL = bool(opts["real"])

cur = ["A"]
class Cnt:
    def reset(self): self.vm = 0; self.lg = 0; self.vm_done = 0; self.lg_done = 0
C = Cnt(); C.reset()
def vmem(s):
    if opts["novmem"] and "load" in s and (C.vm > 9 or "lds" in s): return C.vm
    e(s); C.vm += 1; return C.vm
def lds(s):
    e(s); C.lg += 1; return C.lg
def wait(vm=None, lg=None):
    parts = []
    if vm is not None and vm > C.vm_done:
        n = C.vm - vm
        assert n <= 63
        parts.append("vmcnt(%d)" % n); C.vm_done = vm
    if lg is not None and lg > C.lg_done:
        n = min(C.lg - lg, 15)
        parts.append("lgkmcnt(%d)" % n); C.lg_done = C.lg - n
    if parts: e("s_waitcnt " + " ".join(parts))
bars = {"A": [], "B": []}
def barrier(name):
    bars[cur[0]].append(name)
    if STAMP and (name in "abc" or (cur[0] == "B" and name in ("X1", "d"))): A.stamp(); stn[cur[0]].append(name)
    e("s_barrier    ; " + name)
    if STAMP == 1 and cur[0] == "B" and name not in "ab": A.stamp(); stn[cur[0]].append(name + "+")
stn = {"A": [], "B": []}
def mark(n):
    if STAMP == 2: A.stamp(); stn[cur[0]].append(n)
def run(ts):
    for t in ts: t()

SX, SW, SB, SO = 8, 12, 16, 20
S_WAVE, S_NQ, S_MH, S_N4B, S_LB, S_T0, S_T1, S_T2 = 24, 25, 26, 27, 28, 29, 30, 31
S_TB = 32
S_CH = 40
S_WS, S_XS, S_OS = 3, 4, 5
V_C8 = 0
V_WW = 1
V_TR = 5
V_SEL = 6; V_OOFF = 7
V_XA = 8
V_XOFF = 12
V_T = 16
V_BIAS = 24
V_XF = 32
V_OUT = 64
V_ACC = 96
V_W = 128
RAW = [224, 240, 64, 96]
V_L, V_WOFF, V_BOFF = 32, 33, 34
t0, t1, t2, t3, t4, t5 = 44, 45, 46, 47, 48, 49
V_CT = 50
V_TR2 = 95
SLOT = [0, 32768, 65536, 98304, 131072]
USLOT = [0, 1, 2, 3, 4, 0, 1, 2]
assert 32 + 4 * NXF <= 64 and LAG < NXF

def prune_ops(raw):
    s = []
    for d in range(4):
        a = [raw + 4 * i + d for i in range(4)]
        g = [V_T + i for i in range(4)]
        h1, l1, h2, l2 = [V_T + 4 + i for i in range(4)]
        for i in range(4): s.append("v_or_b32 v%d, v%d, v%d" % (g[i], V_C8, a[i]))
        s.append("v_pk_max_u16 v%d, v%d, v%d" % (h1, g[0], g[1]))
        s.append("v_pk_min_u16 v%d, v%d, v%d" % (l1, g[0], g[1]))
        s.append("v_pk_max_u16 v%d, v%d, v%d" % (h2, g[2], g[3]))
        s.append("v_pk_min_u16 v%d, v%d, v%d" % (l2, g[2], g[3]))
        s.append("v_pk_min_u16 v%d, v%d, v%d" % (h1, h1, h2))
        s.append("v_pk_max_u16 v%d, v%d, v%d" % (l1, l1, l2))
        s.append("v_pk_max_u16 v%d, v%d, v%d" % (h1, h1, l1))
        s.append("v_xor_b32 v%d, v%d, v%d" % (h1, V_C8, h1))
        for i in range(4): s.append("v_sub_u32 v%d, v%d, v%d" % (g[i], g[i], h1))
        for i in range(4): s.append("v_pk_ashrrev_i16 v%d, 15, v%d op_sel_hi:[0,1]" % (g[i], g[i]))
        for i in range(4): s.append("v_and_b32 v%d, v%d, v%d" % (a[i], g[i], a[i]))
    if opts["novalu"]: s = ["; " + o for o in s]
    return s
vg = {}
GR = {"A": [(0, 0), (1, 0), (2, 0), (2, 1)], "B": [(0, 1), (1, 1), (3, 0), (3, 1)]}
def own_par(): return 0 if cur[0] == "A" else 1
def wload1(key, g, i):
    r = RAW[g] + 4 * i
    c, par = GR[cur[0]][g]
    so = S_CH + c
    if par != own_par():
        if i == 0: e("s_%s_u32 s%d, s%d, 0x2000" % ("add" if par else "sub", S_WS, S_CH + c))
        so = S_WS
    vg[key] = vmem("buffer_load_dwordx4 v[%d:%d], v%d, s[%d:%d], s%d offen offset:%d" % (r, r + 3, V_WOFF, SW, SW + 3, so, i * 1024))
def wload_t(key, raw, g): return [lambda i=i: wload1(key, g, i) for i in range(4)]
ww_base = {"A": 0, "B": 0}
def wwrite(g):
    c, par = GR[cur[0]][g]
    want = (c & 1) * 32768 + (par - own_par()) * 2048
    d = want - ww_base[cur[0]]
    if par == 1 and d or d < 0:
        for i in range(4): e("v_%s_u32 v%d, 0x%x, v%d" % ("add" if d > 0 else "subrev", V_WW + i, abs(d), V_WW + i))
        ww_base[cur[0]] = want; d = 0
    for i in range(4):
        r = RAW[g] + 4 * i
        if par == 0:
            w = lds("ds_write_b128 v%d, v[%d:%d] offset:%d" % (V_WW + i, r, r + 3, i * 256 + d))
        else:
            w = lds("ds_write2_b64 v%d, v[%d:%d], v[%d:%d] offset0:%d offset1:%d" % (V_WW + i, r, r + 1, r + 2, r + 3, i * 32 + 1, i * 32))
    mark("w%d" % g)
    return w
vx = {}
def xdma1(u, a, i):
    if i == 0:
        e("s_add_u32 m0, s%d, 0x%x" % (S_LB, SLOT[USLOT[u]] + a * 16384))
        if a: e("s_add_u32 s%d, s%d, 0x4000" % (S_XS, S_TB + u))
        else: e("s_nop 0")
    s = S_XS if a else S_TB + u
    vx[u] = vmem("buffer_load_dwordx4 v%d, s[%d:%d], s%d offen offset:%d %s lds" % (V_XOFF + i, SX, SX + 3, s, i * 1024, XF))
def xdma_t(u): return [lambda a=a, i=i: xdma1(u, a, i) for a in range(2) for i in range(4)]
def tok_t(tok):
    out = []
    for t in tok.split("+"):
        if t == "" or t == "none": continue
        if t[0] == "w": out.append(lambda t=t: wait(vm=vg[t[1:]] if t[1] != "U" else vx[int(t[2])]))
        elif t[0] == "g": c = int(t[1]); out += wload_t(t, RAW[c], c)
        elif len(t) == 2: out += xdma_t(int(t[1]))
        else: out += xdma_t(int(t[1]))[4 * int(t[3]):4 * int(t[3]) + 4]
    return out
lg_w = {}
def trread(c, kq, j, q):
    ks = 4 * c + kq
    r = V_W + 8 * ks + 4 * j + 2 * q
    lg_w[ks] = lds("ds_read_b64_tr_b16 v[%d:%d], v%d offset:%d" % (r, r + 1, V_TR2 if j else V_TR, kq * 8192 + q * 1024 + (c & 1) * 32768))
def tr_t(c): return [lambda kq=kq, j=j, q=q: trread(c, kq, j, q) for kq in range(4) for j in range(2) for q in range(2)]
def prune(c):
    wait(vm=vg["g%d" % c])
    if STAMP == 2 or (STAMP and c == 0): A.stamp(); stn[cur[0]].append("P%d" % c)
    for o in prune_ops(RAW[c]): e(o)
    mark("p%d" % c)

e("s_cmp_ge_u32 s2, 256")
e("s_cbranch_scc1 L_end")
A.stamp()
e("s_load_dwordx4 s[4:7], s[0:1], 0")
e("s_load_dwordx2 s[%d:%d], s[0:1], 16" % (SB, SB + 1))
e("s_load_dwordx2 s[%d:%d], s[0:1], 24" % (SO, SO + 1))
if opts["ctouch"]:
    e("s_getpc_b64 s[%d:%d]" % (S_T1, S_T2))
    A.lab("L_pc")
    e("v_lshlrev_b32 v%d, 7, v0" % V_CT)
    e("v_min_u32 v%d, L_end-L_pc, v%d" % (V_CT, V_CT))
    e("v_mov_b32 v%d, s%d" % (V_CT + 1, S_T2))
    e("v_add_co_u32 v%d, vcc, s%d, v%d" % (V_CT, S_T1, V_CT))
    e("v_lshrrev_b32 v%d, 6, v0" % t0)
    e("v_and_b32 v%d, 63, v0" % V_L)
    e("v_addc_co_u32 v%d, vcc, 0, v%d, vcc" % (V_CT + 1, V_CT + 1))
    vmem("global_load_dword v%d, v[%d:%d], off" % (V_CT + 2, V_CT, V_CT + 1))
else:
    e("v_lshrrev_b32 v%d, 6, v0" % t0)
    e("v_and_b32 v%d, 63, v0" % V_L)
e("v_readfirstlane_b32 s%d, v%d" % (S_WAVE, t0))
e("s_lshr_b32 s%d, s2, 3" % S_T1)
e("s_and_b32 s%d, s%d, 3" % (S_T2, S_T1))
e("v_and_b32 v%d, 15, v%d" % (t0, V_L))
e("v_lshrrev_b32 v%d, 4, v%d" % (t1, V_L))
e("s_lshl_b32 s%d, s%d, 8" % (S_N4B, S_T2))
e("s_and_b32 s%d, s%d, 3" % (S_NQ, S_WAVE))
e("s_lshr_b32 s%d, s%d, 2" % (S_MH, S_WAVE))
e("s_lshl_b32 s%d, s%d, 2" % (S_T0, S_NQ))
e("s_add_u32 s%d, s%d, s%d" % (S_T0, S_T0, S_MH))
e("s_lshl_b32 s%d, s%d, 1" % (S_T0, S_T0))
e("v_and_b32 v%d, 2, v%d" % (t5, t1))
e("v_add_u32 v%d, v%d, v%d" % (t5, t5, t1))
e("v_add_u32 v%d, s%d, v%d" % (t5, S_T0, t5))
e("v_lshlrev_b32 v%d, 12, v%d" % (V_WOFF, t5))
e("v_lshl_add_u32 v%d, v%d, 4, v%d" % (V_WOFF, t0, V_WOFF))
e("v_add_u32 v%d, s%d, v%d" % (V_WOFF, S_N4B, V_WOFF))
e("s_lshr_b32 s%d, s%d, 2" % (S_T1, S_T1))
if opts["krot"]: e("s_and_b32 s%d, s%d, 3" % (S_WS, S_T1))
else: e("s_mov_b32 s%d, 0" % S_WS)
e("s_lshl_b32 s%d, s%d, 17" % (S_CH, S_WS))
for c in range(1, 4): e("s_xor_b32 s%d, s%d, 0x%x" % (S_CH + c, S_CH, c << 17))
e("s_mov_b32 s%d, 0x%x" % (SW + 2, 512 * 1024))
e("s_mov_b32 s%d, 0x00020000" % (SW + 3))
def pk(u): return sum(x << (4 * i) for i, x in enumerate(u))
e("s_mov_b32 s%d, 0x%x" % (S_LB, pk(UO[0])))
for q in range(1, 4):
    if UO[q] == UO[0]: continue
    e("s_cmp_eq_u32 s%d, %d" % (S_T2, q))
    e("s_cselect_b32 s%d, 0x%x, s%d" % (S_LB, pk(UO[q]), S_LB))
e("s_and_b32 s%d, s2, 7" % S_T0)
e("s_lshl_b32 s%d, s%d, 3" % (S_T1, S_T1))
e("s_add_u32 s%d, s%d, s%d" % (S_T1, S_T1, S_T0))
e("s_lshl_b32 s%d, s%d, 3" % (S_T1, S_T1))
e("s_waitcnt lgkmcnt(0)")
e("s_mov_b32 s%d, s6" % SW)
e("s_mov_b32 s%d, s7" % (SW + 1))
A.stamp()
for tok in opts["ci"].split("+"):
    if tok == "bar": e("s_barrier")
    else: run(wload_t(tok, RAW[int(tok[1])], int(tok[1])))
e("s_mov_b32 s%d, s4" % SX)
e("s_mov_b32 s%d, s5" % (SX + 1))
for d, nb in ((SX, 16384 * 1024), (SO, 16384 * 1024), (SB, 1024)):
    e("s_mov_b32 s%d, 0x%x" % (d + 2, nb))
    e("s_mov_b32 s%d, 0x00020000" % (d + 3))
for t in range(8):
    e("s_bfe_u32 s%d, s%d, 0x%x" % (S_TB + t, S_LB, (3 << 16) | (4 * t)))
    e("s_add_u32 s%d, s%d, s%d" % (S_TB + t, S_TB + t, S_T1))
    e("s_lshl_b32 s%d, s%d, 15" % (S_TB + t, S_TB + t))
e("s_lshl_b32 s%d, s%d, 12" % (S_LB, S_NQ))
e("s_lshl_b32 s%d, s%d, 4" % (S_WS, S_WS))
e("s_lshl_b32 s%d, s%d, 2" % (S_T0, S_NQ))
e("s_or_b32 s%d, s%d, s%d" % (S_T0, S_T0, S_WS))
e("v_xor_b32 v%d, s%d, v%d" % (t2, S_T0, V_L))
e("v_lshlrev_b32 v%d, 4, v%d" % (t2, t2))
e("v_add_u32 v%d, s%d, v%d" % (V_XOFF, S_LB, t2))
for i in range(1, 4): e("v_xor_b32 v%d, %d, v%d" % (V_XOFF + i, 16 * i, V_XOFF))
e("v_lshlrev_b32 v%d, 10, v%d" % (t3, t5))
e("v_lshl_add_u32 v%d, v%d, 4, v%d" % (t3, t0, t3))
e("v_add_u32 v%d, 0x%x, v%d" % (V_WW, SLOT[3], t3))
for i in range(1, 4):
    e("v_xor_b32 v%d, %d, v%d" % (V_WW + i, 64 * i, V_WW))
e("v_mov_b32 v%d, 0x80008000" % V_C8)
e("v_xor_b32 v%d, v%d, v%d" % (t2, t1, t0))
e("v_lshlrev_b32 v%d, 4, v%d" % (t2, t2))
e("v_lshl_add_u32 v%d, v%d, 10, v%d" % (V_XA, t0, t2))
for q in range(1, 4): e("v_xor_b32 v%d, %d, v%d" % (V_XA + q, 64 * q, V_XA))
e("v_lshrrev_b32 v%d, 2, v%d" % (t2, t0))
e("v_lshl_add_u32 v%d, v%d, 3, v%d" % (t4, t1, t2))
e("v_lshlrev_b32 v%d, 8, v%d" % (V_TR, t4))
e("v_xor_b32 v%d, s%d, v%d" % (t4, S_NQ, t2))
e("v_lshl_add_u32 v%d, v%d, 6, v%d" % (V_TR, t4, V_TR))
e("v_and_b32 v%d, 3, v%d" % (t4, V_L))
e("v_lshl_add_u32 v%d, v%d, 4, v%d" % (V_TR, t4, V_TR))
e("v_and_b32 v%d, 1, v%d" % (t3, t1))
e("v_lshl_add_u32 v%d, v%d, 3, v%d" % (V_TR, t3, V_TR))
e("v_add_u32 v%d, 0x%x, v%d" % (V_TR, SLOT[3], V_TR))
e("v_xor_b32 v%d, 8, v%d" % (V_TR2, V_TR))
e("s_lshl_b32 s%d, s%d, 6" % (S_T0, S_NQ))
e("s_add_u32 s%d, s%d, s%d" % (S_T0, S_T0, S_N4B))
e("v_lshlrev_b32 v%d, 4, v%d" % (t2, t2))
e("v_add_u32 v%d, s%d, v%d" % (t2, S_T0, t2))
e("v_lshl_add_u32 v%d, v%d, 1, v%d" % (V_BOFF, t4, t2))
e("v_and_b32 v%d, 1, v%d" % (t3, V_L))
e("v_lshl_add_u32 v%d, v%d, 3, v%d" % (t2, t3, t2))
e("v_and_b32 v%d, 2, v%d" % (t4, V_L))
e("v_lshl_add_u32 v%d, v%d, 1, v%d" % (t2, t4, t2))
e("v_lshl_add_u32 v%d, v%d, 12, v%d" % (V_OOFF, t1, t2))
e("v_sub_u32 v%d, 0, v%d" % (t3, t3))
e("v_and_b32 v%d, 0x06060606, v%d" % (t3, t3))
e("v_xor_b32 v%d, 0x05040100, v%d" % (V_SEL, t3))
e("s_cmp_lg_u32 s%d, 0" % S_MH)
e("s_cbranch_scc1 L_B")
nst0 = A.NST
fork = (dict(C.__dict__), dict(vg), dict(vx))
st = {}
def bias_ld():
    vmem("buffer_load_ushort v%d, v%d, s[%d:%d], 0 offen" % (V_BIAS, V_BOFF, SB, SB + 3))
    st["vb"] = vmem("buffer_load_ushort v%d, v%d, s[%d:%d], 0 offen offset:8" % (V_BIAS + 4, V_BOFF, SB, SB + 3))
def bias_fix():
    wait(vm=st["vb"])
    for j in range(2):
        for r in (3, 2, 1, 0): e("v_lshlrev_b32 v%d, 16, v%d" % (V_BIAS + 4 * j + r, V_BIAS + 4 * j))

def stream(seq, mid, post, start_unit, sdel):
    N = len(seq)
    lg_x = {}; mf_pos = {}
    order = []
    for u, s, ks in seq:
        if (u, s) not in order: order.append((u, s))
    acc_of = {t: V_ACC + 8 * (i % 4) for i, t in enumerate(order)}
    sub_end = {(u, s): n for n, (u, s, ks) in enumerate(seq) if ks == 15}
    done_order = sorted(sub_end, key=lambda t: sub_end[t])
    out_of = {t: V_OUT + 4 * (i % 8) for i, t in enumerate(done_order)}
    cs = [-1]
    def xread(n):
        u, s, ks = seq[n]
        q = ks & 3
        r = V_XF + 4 * (n % NXF)
        lg_x[n] = lds("ds_read_b128 v[%d:%d], v%d offset:%d" % (r, r + 3, V_XA + q, s * 16384 + (ks >> 2) * 256))
        nxt = [m for m in range(n + 1, N) if (seq[m][2] & 3) == q]
        if nxt and seq[nxt[0]][0] != u:
            d = SLOT[USLOT[seq[nxt[0]][0]]] - SLOT[USLOT[u]]
            op = "v_add_u32 v%d, 0x%x, v%d" % (V_XA + q, d, V_XA + q) if d > 0 else "v_subrev_u32 v%d, 0x%x, v%d" % (V_XA + q, -d, V_XA + q)
            mid[cs[0]].append(lambda: e(op))
    def epi_ops(t):
        d = acc_of[t]; o = out_of[t]
        def cvt(r):
            gap = len(A.out) - mf_pos[t] - 1
            if gap < 8: e("s_nop %d" % (7 - gap)); mf_pos[t] -= 8
            e("v_cvt_pk_bf16_f32 v%d, v%d, v%d" % (o + r, d + r, d + 4 + r))
        return ([lambda r=r: cvt(r) for r in range(4)]
              + [lambda r=r: e("v_mov_b32_dpp v%d, v%d quad_perm:[1,0,3,2] row_mask:0xf bank_mask:0xf" % (V_T + r, o + r)) for r in range(4)]
              + [lambda r=r: e("v_perm_b32 v%d, v%d, v%d, v%d" % (o + r, V_T + r, o + r, V_SEL)) for r in range(4)])
    def store_ops(t):
        u, s = t; o = out_of[t]
        def sto(r):
            if r == 0 and s: e("s_add_u32 s%d, s%d, 0x4000" % (S_OS, S_TB + u))
            vmem("buffer_store_dword v%d, v%d, s[%d:%d], s%d offen offset:%d %s" % (o + r, V_OOFF, SO, SO + 3, S_OS if s else S_TB + u, r * 1024, STF))
        fs = [lambda r=r: sto(r) for r in range(4)]
        for f in fs: f.vm = 1
        return fs
    tail = []
    free = 0; ready = {}
    for t in done_order:
        n = max(sub_end[t] + CPOS, free)
        ops = epi_ops(t) if not opts["noepi"] else []
        for k in range(6):
            (mid[n + k] if n + k < N else tail).extend(ops[2 * k:2 * k + 2])
        free = n + 6
        nxt_use = [m for m in range(sub_end[t] + 1, N) if acc_of[seq[m][:2]] == acc_of[t]]
        assert not nxt_use or nxt_use[0] > n + 2, t
        ready[t] = n + 6
    m = sdel
    for i, t in enumerate(done_order):
        m = max(m, ready[t])
        for f in (store_ops(t) if not opts["nost"] else []):
            backlog = i + 1 < len(done_order) and ready[done_order[i + 1]] <= m
            while m < N and mid[m] and not (backlog and opts["sstep"] == 1): m += 1
            (mid[m] if m < N else tail).append(f)
            m += 1
        if i + 8 < len(done_order): assert m <= ready[done_order[i + 8]] - 6, "output ring overflow"
    def mfma(n):
        u, s, ks = seq[n]
        need = max(lg_x[n], lg_w[ks])
        if need > C.lg_done:
            for m in range(n + 1, min(N, n + WSTEP)):
                if m in lg_x: need = max(need, lg_x[m])
            wait(lg=need)
        x = V_XF + 4 * (n % NXF)
        for j in range(2):
            d = acc_of[(u, s)] + 4 * j; w_ = V_W + 8 * ks + 4 * j
            cc = V_BIAS + 4 * j if ks == 0 else d
            if not opts["nomfma"]: e("v_mfma_f32_16x16x32_bf16 v[%d:%d], v[%d:%d], v[%d:%d], v[%d:%d]" % (d, d + 3, x, x + 3, w_, w_ + 3, cc, cc + 3))
            if j == 0: run(mid[n])
        mf_pos[(u, s)] = len(A.out) - 1
    st["late"]()
    if start_unit:
        for q in range(4): e("v_add_u32 v%d, 0x%x, v%d" % (V_XA + q, SLOT[USLOT[start_unit]], V_XA + q))
    for n in range(LAG): xread(n)
    run(mid[-1])
    for n in range(N):
        cs[0] = n
        if n + LAG < N: xread(n + LAG)
        mfma(n)
        run(post[n])
    run(tail)
def finish():
    if STAMP:
        A.stamp()
        e("s_waitcnt vmcnt(0)")
        A.stamp()
        e("s_barrier")
        A.stamp_dump(S_WAVE)

assert not opts["krot"]
cur[0] = "A"
e("s_setprio %d" % (opts["pb"] + 1))
prune(0)
e("s_setprio %d" % opts["pa"])
wwrite(0)
bias_ld()
run(tok_t(opts["a0"]))
prune(1)
for c in (1, 2):
    run(tok_t(opts["s%d" % c]))
    wait(lg=C.lg)
    barrier("ab"[c - 1])
    run(tr_t(c - 1)); mark("t%d" % (c - 1))
    wwrite(c)
    run(tok_t(opts["a%d" % c]))
    if c == 2:
        bias_fix()
        e("s_setprio 3")
    prune(c + 1)
wwrite(3)
wait(lg=C.lg, vm=vx.get(0))
e("s_setprio %d" % opts["pm"])
barrier("c")
seq = []
for u in range(2):
    for ks in range(12):
        for s in range(2): seq.append((u, s, ks))
for u in range(2):
    for s in range(2):
        for ks in range(12, 16): seq.append((u, s, ks))
for u in range(2, 8):
    for s in range(2):
        for ks in range(16): seq.append((u, s, ks))
mid = {n: [] for n in range(-1, len(seq))}; post = {n: [] for n in range(len(seq))}
for k, t in enumerate(tr_t(2)): mid[k // 2].append(t)
DP = opts["dpos"]
post[24 - LAG - 1].append(lambda: (wait(vm=vx.get(1)), barrier("X1")))
post[DP].append(lambda: barrier("d"))
for k, t in enumerate(tr_t(3)): mid[DP + 1 + k // 2].append(t)
post[64 - LAG - 1].append(lambda: (wait(vm=vx.get(2)), barrier("X2")))
post[64].append(lambda: barrier("e"))
for u in range(3, 8):
    post[32 * u - LAG - 1].append(lambda u=u: barrier("Y%d" % u))
st["late"] = lambda: None
stream(seq, mid, post, 0, opts["sdel"])
finish()
e("s_endpgm")

A.lab("L_B")
cur[0] = "B"; A.NST = nst0
C.__dict__.update(fork[0]); vg.clear(); vg.update(fork[1]); vx.clear(); vx.update(fork[2])
e("s_setprio %d" % opts["pb"])
run(tok_t(opts["bi"]))
prune(0)
wwrite(0)
run(tok_t(opts["b0"]))
wait(lg=C.lg)
barrier("a")
prune(1)
wwrite(1)
run(tok_t(opts["b1"]))
wait(lg=C.lg)
barrier("b")
prune(2)
run(tok_t(opts["b2"]))
wait(vm=vg["g3"])
ops = prune_ops(RAW[3])
for o in ops[:opts["bcut"]]: e(o)
wait(vm=vx.get(0))
barrier("c")
e("s_setprio %d" % opts["pw"])
wwrite(2)
if opts["bcut"] >= 96: wwrite(3)
e("s_setprio %d" % opts["pbm"])
run(tok_t(opts["b3"]))
wait(vm=vx.get(1))
barrier("X1")
if opts["bcut"] < 96:
    for o in ops[opts["bcut"]:]: e(o)
    e("s_setprio %d" % opts["pw"])
    wwrite(3)
    e("s_setprio %d" % opts["pbm"])
run(tok_t(opts["b4"]))
wait(lg=C.lg)
barrier("d")
def paced(ts):
    for t in ts:
        t()
        if opts["bpace"] and not opts["novmem"]: wait(vm=C.vm - opts["bpace"])
if opts["nodma"]:
    xdma_t = lambda u: []
run(xdma_t(3))
wait(vm=vx.get(2))
barrier("X2")
barrier("e")
paced(xdma_t(4))
wait(vm=vx.get(3))
barrier("Y3")
paced(xdma_t(5))
wait(vm=vx.get(4))
barrier("Y4")
paced(xdma_t(6))
wait(vm=vx.get(5))
barrier("Y5")
paced(xdma_t(7))
wait(vm=vx.get(6))
barrier("Y6")
wait(vm=vx.get(7))
barrier("Y7")
assert bars["A"][:len(bars["B"])] == bars["B"], (bars["A"], bars["B"])
if STAMP:
    for nm in bars["A"][len(bars["B"]):]: barrier(nm)
    finish()
A.lab("L_end")
e("s_endpgm")
sys.stderr.write("barriers: %s ; stamps %d\nA: %s\nB: %s\n" % (" ".join(bars["A"]), A.NST, "".join("%6s" % x for x in stn["A"]), "".join("%6s" % x for x in stn["B"])))
print(A.text(vgpr=256, sgpr=102 if STAMP else 48))
```

```python
NAME = "standalone__structured_sparse_n_m__ragged"
class Asm:
    def __init__(self, grid, block, lds, stamp=False, waves=8):
        self.out = []; self.grid = grid; self.block = block; self.lds = lds
        self.STAMP = stamp; self.NST = 0; self.waves = waves; self.SB = 44
    def e(self, s): self.out.append("    " + s)
    def lab(self, s): self.out.append(s + ":")
    def c(self, s): self.out.append("    ; " + s)
    def srd(self, d, b, nbytes):
        e = self.e
        e("s_mov_b32 s%d, s%d" % (d, b))
        e("s_and_b32 s%d, s%d, 0xffff" % (d + 1, b + 1))
        e("s_mov_b32 s%d, 0x%x" % (d + 2, nbytes))
        e("s_mov_b32 s%d, 0x00020000" % (d + 3))
    def stamp(self, name=None):
        if not self.STAMP: return
        assert self.SB + 6 + 2 * self.NST + 1 < 102
        if self.NST == 0: self.e("s_memrealtime s[%d:%d]" % (self.SB + 2, self.SB + 3))
        self.e("%s s[%d:%d]" % ("s_memrealtime" if getattr(self, "REAL", False) else "s_memtime", self.SB + 6 + 2 * self.NST, self.SB + 7 + 2 * self.NST))
        self.NST += 1
    def stamp_dump(self, s_wave, srd=8):
        if not self.STAMP: return
        e = self.e
        e("s_memrealtime s[%d:%d]" % (self.SB + 4, self.SB + 5))
        e("s_waitcnt lgkmcnt(0)")
        e("s_load_dwordx2 s[4:5], s[0:1], 40")
        e("s_waitcnt lgkmcnt(0)")
        self.srd(srd, 4, 1 << 24)
        e("s_mul_i32 s6, s2, %d" % self.waves)
        e("s_add_u32 s6, s6, s%d" % s_wave)
        e("s_lshl_b32 s6, s6, 8")
        e("v_mov_b32 v1, 0")
        e("s_getreg_b32 s%d, hwreg(HW_REG_XCC_ID)" % self.SB)
        e("s_getreg_b32 s%d, hwreg(HW_REG_HW_ID)" % (self.SB + 1))
        n = (3 + self.NST + 1) // 2
        for i in range(n):
            for j in range(4):
                if self.SB + 4 * i + j < 102: e("v_mov_b32 v%d, s%d" % (4 + j, self.SB + 4 * i + j))
            e("buffer_store_dwordx4 v[4:7], v1, s[%d:%d], s6 offen offset:%d" % (srd, srd + 3, 16 * i))
            e("s_nop 1")
    def text(self, vgpr=256, sgpr=96, accum=None):
        if accum is None: accum = min(256, (vgpr + 3) // 4 * 4)
        hdr = """; Kernarg layout for this problem (48 bytes, ptrs only, base s[0:1]):
;   offset   0: d_in[0] x  shape=(4, 4096, 512) dtype=bfloat16 strides=(4194304, 1024, 2) contiguous=True
;   offset   8: d_in[1] w  shape=(512, 512) dtype=bfloat16 strides=(1024, 2) contiguous=True
;   offset  16: d_in[2] b  shape=(512,) dtype=bfloat16 strides=(2,) contiguous=True
;   offset  24: d_out     shape=(4, 4096, 512) dtype=bfloat16 (2 bytes/elem)
;   offset  32: d_debug   256 bytes
;   offset  40: d_ws      268435456 bytes workspace
; @launch grid=(%d,1,1) block=(%d,1,1) lds=%d
.amdgcn_target "amdgcn-amd-amdhsa--gfx950"
.text
.globl %s_kernel
.p2align 8
.type %s_kernel,@function
%s_kernel:""" % (self.grid, self.block, self.lds, NAME, NAME, NAME)
        ftr = """.section .rodata,"a"
.p2align 6
.amdhsa_kernel %s_kernel
  .amdhsa_next_free_vgpr %d
  .amdhsa_next_free_sgpr %d
  .amdhsa_accum_offset %d
  .amdhsa_group_segment_fixed_size 0
  .amdhsa_kernarg_size 48
  .amdhsa_user_sgpr_count 2
  .amdhsa_user_sgpr_kernarg_segment_ptr 1
  .amdhsa_system_sgpr_workgroup_id_x 1
.end_amdhsa_kernel
""" % (NAME, vgpr, sgpr, accum)
        return hdr + "\n" + "\n".join(self.out) + "\n" + ftr
```

```python
import sys
from common import *

opts = dict(stamp=0, lag=7, nxf=8, wstep=2, st="nt", xf="", ctouch=1, novalu=0, nomfma=0, novmem=0, real=0,
            uo="01234567,45670123,01234567,45670123", cpos=3, krot=0, sdel=90, nost=0, noepi=0, nodma=0, nobar=0, stmid=1,
            ci="g0+bar+g1", bi="none", a0="g2+g3", b0="g2+g3", a1="U0h0", b1="U0h1", a2="none", b2="U1h1", pa=1, pb=2, dpos=36, bcut=64, dstep=2, bpace=3, s1="none", s2="none", b3="U2", b4="none", pm=2, pw=3, pbm=0, sstep=2, t2r=1, t3r=2, biasat=1, stl="nt", nl=0, a3="U1h0", b2bar=1)
for a in sys.argv[1:]:
    k, v = a.split("=")
    assert k in opts, k
    opts[k] = int(v) if v.lstrip("-").isdigit() else v
STAMP = opts["stamp"]; LAG = opts["lag"]; NXF = opts["nxf"]; WSTEP = opts["wstep"]
STF = opts["st"].replace("_", " ") if opts["st"] != "none" else ""
XF = opts["xf"].replace("_", " ")
CPOS = opts["cpos"]
UO = [[int(c) for c in s] for s in opts["uo"].split(",")]
assert all(sorted(u) == list(range(8)) for u in UO) and len(UO) == 4

A = Asm(256, 512, 163840, stamp=bool(STAMP), waves=8)
e = A.e
A.REAL = bool(opts["real"])

cur = ["A"]
class Cnt:
    def reset(self): self.vm = 0; self.lg = 0; self.vm_done = 0; self.lg_done = 0
C = Cnt(); C.reset()
def vmem(s):
    if opts["novmem"] and "load" in s and (C.vm > 9 or "lds" in s): return C.vm
    e(s); C.vm += 1; return C.vm
def lds(s):
    e(s); C.lg += 1; return C.lg
def wait(vm=None, lg=None):
    parts = []
    if vm is not None and vm > C.vm_done:
        n = C.vm - vm
        assert n <= 63
        parts.append("vmcnt(%d)" % n); C.vm_done = vm
    if lg is not None and lg > C.lg_done:
        n = min(C.lg - lg, 15)
        parts.append("lgkmcnt(%d)" % n); C.lg_done = C.lg - n
    if parts: e("s_waitcnt " + " ".join(parts))
bars = {"A": [], "B": []}
def barrier(name):
    bars[cur[0]].append(name)
    if STAMP and (name in "abc" or (cur[0] == "B" and name in ("X1", "d"))): A.stamp(); stn[cur[0]].append(name)
    if not (opts["nobar"] and name not in ("a", "b", "b2", "c")): e("s_barrier    ; " + name)
    if STAMP == 1 and cur[0] == "B" and name not in "ab": A.stamp(); stn[cur[0]].append(name + "+")
stn = {"A": [], "B": []}
def mark(n):
    if STAMP == 2: A.stamp(); stn[cur[0]].append(n)
def run(ts):
    for t in ts: t()

SX, SW, SB, SO = 8, 12, 16, 20
S_WAVE, S_NQ, S_MH, S_N4B, S_LB, S_T0, S_T1, S_T2 = 24, 25, 26, 27, 28, 29, 30, 31
S_TB = 32
S_CH = 40
S_WS, S_XS, S_OS = 3, 4, 5
V_C8 = 0
V_WW = 1
V_TR = 5
V_SEL = 6; V_OOFF = 7
V_XA = 8
V_XOFF = 12
V_T = 16
V_BIAS = 24
V_XF = 32
V_OUT = 64
V_ACC = 96
V_W = 128
RAW = [224, 240, 64, 96]
V_L, V_WOFF, V_BOFF = 32, 33, 34
t0, t1, t2, t3, t4, t5 = 44, 45, 46, 47, 48, 49
V_CT = 50
V_TR2 = 95
SLOT = [0, 32768, 65536, 98304, 131072]
USLOT = [0, 1, 2, 3, 4, 0, 1, 2]
assert 32 + 4 * NXF <= 64 and LAG < NXF

def prune_ops(raw):
    s = []
    for d in range(4):
        a = [raw + 4 * i + d for i in range(4)]
        g = [V_T + i for i in range(4)]
        h1, l1, h2, l2 = [V_T + 4 + i for i in range(4)]
        for i in range(4): s.append("v_or_b32 v%d, v%d, v%d" % (g[i], V_C8, a[i]))
        s.append("v_pk_max_u16 v%d, v%d, v%d" % (h1, g[0], g[1]))
        s.append("v_pk_min_u16 v%d, v%d, v%d" % (l1, g[0], g[1]))
        s.append("v_pk_max_u16 v%d, v%d, v%d" % (h2, g[2], g[3]))
        s.append("v_pk_min_u16 v%d, v%d, v%d" % (l2, g[2], g[3]))
        s.append("v_pk_min_u16 v%d, v%d, v%d" % (h1, h1, h2))
        s.append("v_pk_max_u16 v%d, v%d, v%d" % (l1, l1, l2))
        s.append("v_pk_max_u16 v%d, v%d, v%d" % (h1, h1, l1))
        s.append("v_xor_b32 v%d, v%d, v%d" % (h1, V_C8, h1))
        for i in range(4): s.append("v_sub_u32 v%d, v%d, v%d" % (g[i], g[i], h1))
        for i in range(4): s.append("v_pk_ashrrev_i16 v%d, 15, v%d op_sel_hi:[0,1]" % (g[i], g[i]))
        for i in range(4): s.append("v_and_b32 v%d, v%d, v%d" % (a[i], g[i], a[i]))
    if opts["novalu"]: s = ["; " + o for o in s]
    return s
vg = {}
GR = {"A": [(0, 0), (1, 0), (2, 0), (2, 1)], "B": [(0, 1), (1, 1), (3, 0), (3, 1)]}
def own_par(): return 0 if cur[0] == "A" else 1
def wload1(key, g, i):
    r = RAW[g] + 4 * i
    c, par = GR[cur[0]][g]
    so = S_CH + c; vo = V_WOFF
    if par != own_par():
        vo = V_WOFF + 2
        if i == 0: e("v_xor_b32 v%d, 0x2000, v%d" % (vo, V_WOFF))
    vg[key] = vmem("buffer_load_dwordx4 v[%d:%d], v%d, s[%d:%d], s%d offen offset:%d" % (r, r + 3, vo, SW, SW + 3, so, i * 1024))
def wload_t(key, raw, g): return [lambda i=i: wload1(key, g, i) for i in range(4)]
ww_base = {"A": 0, "B": 0}
def wwrite(g):
    c, par = GR[cur[0]][g]
    want = (c & 1) * 32768 + (par - own_par()) * 2048
    d = want - ww_base[cur[0]]
    if par == 1 and d or d < 0:
        for i in range(4): e("v_%s_u32 v%d, 0x%x, v%d" % ("add" if d > 0 else "subrev", V_WW + i, abs(d), V_WW + i))
        ww_base[cur[0]] = want; d = 0
    for i in range(4):
        r = RAW[g] + 4 * i
        if par == 0:
            w = lds("ds_write_b128 v%d, v[%d:%d] offset:%d" % (V_WW + i, r, r + 3, i * 256 + d))
        else:
            w = lds("ds_write2_b64 v%d, v[%d:%d], v[%d:%d] offset0:%d offset1:%d" % (V_WW + i, r, r + 1, r + 2, r + 3, i * 32 + 1, i * 32))
    mark("w%d" % g)
    return w
vx = {}
def xdma1(u, a, i):
    if i == 0:
        e("s_add_u32 m0, s%d, 0x%x" % (S_LB, SLOT[USLOT[u]] + a * 16384))
        if a: e("s_add_u32 s%d, s%d, 0x4000" % (S_XS, S_TB + u))
        else: e("s_nop 0")
    s = S_XS if a else S_TB + u
    vx[u] = vmem("buffer_load_dwordx4 v%d, s[%d:%d], s%d offen offset:%d %s lds" % (V_XOFF + i, SX, SX + 3, s, i * 1024, XF))
def xdma_t(u): return [lambda a=a, i=i: xdma1(u, a, i) for a in range(2) for i in range(4)]
def tok_t(tok):
    out = []
    for t in tok.split("+"):
        if t == "" or t == "none": continue
        if t[0] == "w": out.append(lambda t=t: wait(vm=vg[t[1:]] if t[1] != "U" else vx[int(t[2])]))
        elif t[0] == "g": c = int(t[1]); out += wload_t(t, RAW[c], c)
        elif len(t) == 2: out += xdma_t(int(t[1]))
        else: out += xdma_t(int(t[1]))[4 * int(t[3]):4 * int(t[3]) + 4]
    return out
lg_w = {}
def trread(c, kq, j, q):
    ks = 4 * c + kq
    r = V_W + 8 * ks + 4 * j + 2 * q
    lg_w[ks] = lds("ds_read_b64_tr_b16 v[%d:%d], v%d offset:%d" % (r, r + 1, V_TR2 if j else V_TR, kq * 8192 + q * 1024 + (c & 1) * 32768))
def tr_t(c): return [lambda kq=kq, j=j, q=q: trread(c, kq, j, q) for kq in range(4) for j in range(2) for q in range(2)]
def prune(c):
    wait(vm=vg["g%d" % c])
    if STAMP == 2 or (STAMP and c == 0): A.stamp(); stn[cur[0]].append("P%d" % c)
    for o in prune_ops(RAW[c]): e(o)
    mark("p%d" % c)

e("s_cmp_ge_u32 s2, 256")
e("s_cbranch_scc1 L_end")
A.stamp()
e("s_load_dwordx4 s[4:7], s[0:1], 0")
e("s_load_dwordx2 s[%d:%d], s[0:1], 16" % (SB, SB + 1))
e("s_load_dwordx2 s[%d:%d], s[0:1], 24" % (SO, SO + 1))
if opts["ctouch"]:
    e("s_getpc_b64 s[%d:%d]" % (S_T1, S_T2))
    A.lab("L_pc")
    e("v_lshlrev_b32 v%d, 7, v0" % V_CT)
    e("v_min_u32 v%d, L_end-L_pc, v%d" % (V_CT, V_CT))
    e("v_mov_b32 v%d, s%d" % (V_CT + 1, S_T2))
    e("v_add_co_u32 v%d, vcc, s%d, v%d" % (V_CT, S_T1, V_CT))
    e("v_lshrrev_b32 v%d, 6, v0" % t0)
    e("v_and_b32 v%d, 63, v0" % V_L)
    e("v_addc_co_u32 v%d, vcc, 0, v%d, vcc" % (V_CT + 1, V_CT + 1))
    if opts["ctouch"] == 1: vmem("global_load_dword v%d, v[%d:%d], off" % (V_CT + 2, V_CT, V_CT + 1))
else:
    e("v_lshrrev_b32 v%d, 6, v0" % t0)
    e("v_and_b32 v%d, 63, v0" % V_L)
e("v_readfirstlane_b32 s%d, v%d" % (S_WAVE, t0))
e("s_lshr_b32 s%d, s2, 3" % S_T1)
e("s_and_b32 s%d, s%d, 3" % (S_T2, S_T1))
e("v_and_b32 v%d, 15, v%d" % (t0, V_L))
e("v_lshrrev_b32 v%d, 4, v%d" % (t1, V_L))
e("s_lshl_b32 s%d, s%d, 8" % (S_N4B, S_T2))
e("s_and_b32 s%d, s%d, 3" % (S_NQ, S_WAVE))
e("s_lshr_b32 s%d, s%d, 2" % (S_MH, S_WAVE))
e("s_lshl_b32 s%d, s%d, 2" % (S_T0, S_NQ))
e("s_add_u32 s%d, s%d, s%d" % (S_T0, S_T0, S_MH))
e("s_lshl_b32 s%d, s%d, 1" % (S_T0, S_T0))
e("v_and_b32 v%d, 2, v%d" % (t5, t1))
e("v_add_u32 v%d, v%d, v%d" % (t5, t5, t1))
e("v_add_u32 v%d, s%d, v%d" % (t5, S_T0, t5))
e("v_lshlrev_b32 v%d, 12, v%d" % (V_WOFF, t5))
e("v_lshl_add_u32 v%d, v%d, 4, v%d" % (V_WOFF, t0, V_WOFF))
e("v_add_u32 v%d, s%d, v%d" % (V_WOFF, S_N4B, V_WOFF))
e("s_lshr_b32 s%d, s%d, 2" % (S_T1, S_T1))
if opts["krot"]: e("s_and_b32 s%d, s%d, %d" % (S_WS, S_T1, opts["krot"]))
else: e("s_mov_b32 s%d, 0" % S_WS)
e("s_lshl_b32 s%d, s%d, 17" % (S_CH, S_WS))
for c in range(1, 4): e("s_xor_b32 s%d, s%d, 0x%x" % (S_CH + c, S_CH, c << 17))
e("s_mov_b32 s%d, 0x%x" % (SW + 2, 512 * 1024))
e("s_mov_b32 s%d, 0x00020000" % (SW + 3))
def pk(u): return sum(x << (4 * i) for i, x in enumerate(u))
e("s_mov_b32 s%d, 0x%x" % (S_LB, pk(UO[0])))
for q in range(1, 4):
    if UO[q] == UO[0]: continue
    e("s_cmp_eq_u32 s%d, %d" % (S_T2, q))
    e("s_cselect_b32 s%d, 0x%x, s%d" % (S_LB, pk(UO[q]), S_LB))
e("s_and_b32 s%d, s2, 7" % S_T0)
e("s_lshl_b32 s%d, s%d, 3" % (S_T1, S_T1))
e("s_add_u32 s%d, s%d, s%d" % (S_T1, S_T1, S_T0))
e("s_lshl_b32 s%d, s%d, 3" % (S_T1, S_T1))
e("s_waitcnt lgkmcnt(0)")
e("s_mov_b32 s%d, s6" % SW)
e("s_mov_b32 s%d, s7" % (SW + 1))
A.stamp()
for tok in opts["ci"].split("+"):
    if tok == "bar":
        if opts["ctouch"] == 2: vmem("global_load_dword v%d, v[%d:%d], off" % (V_CT + 2, V_CT, V_CT + 1))
        e("s_barrier")
    else: run(wload_t(tok, RAW[int(tok[1])], int(tok[1])))
e("s_mov_b32 s%d, s4" % SX)
e("s_mov_b32 s%d, s5" % (SX + 1))
for d, nb in ((SX, 16384 * 1024), (SO, 16384 * 1024), (SB, 1024)):
    e("s_mov_b32 s%d, 0x%x" % (d + 2, nb))
    e("s_mov_b32 s%d, 0x00020000" % (d + 3))
for t in range(8):
    e("s_bfe_u32 s%d, s%d, 0x%x" % (S_TB + t, S_LB, (3 << 16) | (4 * t)))
    e("s_add_u32 s%d, s%d, s%d" % (S_TB + t, S_TB + t, S_T1))
    e("s_lshl_b32 s%d, s%d, 15" % (S_TB + t, S_TB + t))
e("s_lshl_b32 s%d, s%d, 12" % (S_LB, S_NQ))
e("s_lshl_b32 s%d, s%d, 4" % (S_WS, S_WS))
e("s_lshl_b32 s%d, s%d, 2" % (S_T0, S_NQ))
e("s_or_b32 s%d, s%d, s%d" % (S_T0, S_T0, S_WS))
e("v_xor_b32 v%d, s%d, v%d" % (t2, S_T0, V_L))
e("v_lshlrev_b32 v%d, 4, v%d" % (t2, t2))
e("v_add_u32 v%d, s%d, v%d" % (V_XOFF, S_LB, t2))
for i in range(1, 4): e("v_xor_b32 v%d, %d, v%d" % (V_XOFF + i, 16 * i, V_XOFF))
e("v_lshlrev_b32 v%d, 10, v%d" % (t3, t5))
e("v_lshl_add_u32 v%d, v%d, 4, v%d" % (t3, t0, t3))
e("v_add_u32 v%d, 0x%x, v%d" % (V_WW, SLOT[3], t3))
for i in range(1, 4):
    e("v_xor_b32 v%d, %d, v%d" % (V_WW + i, 64 * i, V_WW))
e("v_mov_b32 v%d, 0x80008000" % V_C8)
e("v_xor_b32 v%d, v%d, v%d" % (t2, t1, t0))
e("v_lshlrev_b32 v%d, 4, v%d" % (t2, t2))
e("v_lshl_add_u32 v%d, v%d, 10, v%d" % (V_XA, t0, t2))
for q in range(1, 4): e("v_xor_b32 v%d, %d, v%d" % (V_XA + q, 64 * q, V_XA))
e("v_lshrrev_b32 v%d, 2, v%d" % (t2, t0))
e("v_lshl_add_u32 v%d, v%d, 3, v%d" % (t4, t1, t2))
e("v_lshlrev_b32 v%d, 8, v%d" % (V_TR, t4))
e("v_xor_b32 v%d, s%d, v%d" % (t4, S_NQ, t2))
e("v_lshl_add_u32 v%d, v%d, 6, v%d" % (V_TR, t4, V_TR))
e("v_and_b32 v%d, 3, v%d" % (t4, V_L))
e("v_lshl_add_u32 v%d, v%d, 4, v%d" % (V_TR, t4, V_TR))
e("v_and_b32 v%d, 1, v%d" % (t3, t1))
e("v_lshl_add_u32 v%d, v%d, 3, v%d" % (V_TR, t3, V_TR))
e("v_add_u32 v%d, 0x%x, v%d" % (V_TR, SLOT[3], V_TR))
e("v_xor_b32 v%d, 8, v%d" % (V_TR2, V_TR))
e("s_lshl_b32 s%d, s%d, 6" % (S_T0, S_NQ))
e("s_add_u32 s%d, s%d, s%d" % (S_T0, S_T0, S_N4B))
e("v_lshlrev_b32 v%d, 4, v%d" % (t2, t2))
e("v_add_u32 v%d, s%d, v%d" % (t2, S_T0, t2))
e("v_lshl_add_u32 v%d, v%d, 1, v%d" % (V_BOFF, t4, t2))
e("v_and_b32 v%d, 1, v%d" % (t3, V_L))
e("v_lshl_add_u32 v%d, v%d, 3, v%d" % (t2, t3, t2))
e("v_and_b32 v%d, 2, v%d" % (t4, V_L))
e("v_lshl_add_u32 v%d, v%d, 1, v%d" % (t2, t4, t2))
e("v_lshl_add_u32 v%d, v%d, 12, v%d" % (V_OOFF, t1, t2))
e("v_sub_u32 v%d, 0, v%d" % (t3, t3))
e("v_and_b32 v%d, 0x06060606, v%d" % (t3, t3))
e("v_xor_b32 v%d, 0x05040100, v%d" % (V_SEL, t3))
e("s_cmp_lg_u32 s%d, 0" % S_MH)
e("s_cbranch_scc1 L_B")
nst0 = A.NST
fork = (dict(C.__dict__), dict(vg), dict(vx))
st = {}
def bias_ld():
    vmem("buffer_load_ushort v%d, v%d, s[%d:%d], 0 offen" % (V_BIAS, V_BOFF, SB, SB + 3))
    st["vb"] = vmem("buffer_load_ushort v%d, v%d, s[%d:%d], 0 offen offset:8" % (V_BIAS + 4, V_BOFF, SB, SB + 3))
def bias_fix():
    wait(vm=st["vb"])
    for j in range(2):
        for r in (3, 2, 1, 0): e("v_lshlrev_b32 v%d, 16, v%d" % (V_BIAS + 4 * j + r, V_BIAS + 4 * j))

def stream(seq, mid, post, start_unit, sdel):
    N = len(seq)
    lg_x = {}; mf_pos = {}
    order = []
    for u, s, ks in seq:
        if (u, s) not in order: order.append((u, s))
    acc_of = {t: V_ACC + 8 * (i % 4) for i, t in enumerate(order)}
    sub_end = {(u, s): n for n, (u, s, ks) in enumerate(seq) if ks == 15}
    done_order = sorted(sub_end, key=lambda t: sub_end[t])
    out_of = {t: V_OUT + 4 * (i % 8) for i, t in enumerate(done_order)}
    cs = [-1]
    def xread(n):
        u, s, ks = seq[n]
        q = ks & 3
        r = V_XF + 4 * (n % NXF)
        lg_x[n] = lds("ds_read_b128 v[%d:%d], v%d offset:%d" % (r, r + 3, V_XA + q, s * 16384 + (ks >> 2) * 256))
        nxt = [m for m in range(n + 1, N) if (seq[m][2] & 3) == q]
        if nxt and seq[nxt[0]][0] != u:
            d = SLOT[USLOT[seq[nxt[0]][0]]] - SLOT[USLOT[u]]
            op = "v_add_u32 v%d, 0x%x, v%d" % (V_XA + q, d, V_XA + q) if d > 0 else "v_subrev_u32 v%d, 0x%x, v%d" % (V_XA + q, -d, V_XA + q)
            mid[cs[0]].append(lambda: e(op))
    def epi_ops(t):
        d = acc_of[t]; o = out_of[t]
        def cvt(r):
            gap = len(A.out) - mf_pos[t] - 1
            if gap < 8: e("s_nop %d" % (7 - gap)); mf_pos[t] -= 8
            e("v_cvt_pk_bf16_f32 v%d, v%d, v%d" % (o + r, d + r, d + 4 + r))
        return ([lambda r=r: cvt(r) for r in range(4)]
              + [lambda r=r: e("v_mov_b32_dpp v%d, v%d quad_perm:[1,0,3,2] row_mask:0xf bank_mask:0xf" % (V_T + r, o + r)) for r in range(4)]
              + [lambda r=r: e("v_perm_b32 v%d, v%d, v%d, v%d" % (o + r, V_T + r, o + r, V_SEL)) for r in range(4)])
    def store_ops(t):
        u, s = t; o = out_of[t]
        def sto(r):
            if r == 0 and s: e("s_add_u32 s%d, s%d, 0x4000" % (S_OS, S_TB + u))
            vmem("buffer_store_dword v%d, v%d, s[%d:%d], s%d offen offset:%d %s" % (o + r, V_OOFF, SO, SO + 3, S_OS if s else S_TB + u, r * 1024, STF if done_order.index(t) < len(done_order) - opts["nl"] else opts["stl"].replace("_", " ").replace("none", "")))
        fs = [lambda r=r: sto(r) for r in range(4)]
        for f in fs: f.vm = 1
        return fs
    tail = []
    free = 0; ready = {}
    for t in done_order:
        n = max(sub_end[t] + CPOS, free)
        ops = epi_ops(t) if not opts["noepi"] else []
        for k in range(6):
            (mid[n + k] if n + k < N else tail).extend(ops[2 * k:2 * k + 2])
        free = n + 6
        nxt_use = [m for m in range(sub_end[t] + 1, N) if acc_of[seq[m][:2]] == acc_of[t]]
        assert not nxt_use or nxt_use[0] > n + 2, t
        ready[t] = n + 6
    m = sdel
    for i, t in enumerate(done_order):
        m = max(m, ready[t])
        for f in (store_ops(t) if not opts["nost"] else []):
            backlog = i + 1 < len(done_order) and ready[done_order[i + 1]] <= m
            while m < N and mid[m] and not (backlog and opts["sstep"] == 1): m += 1
            (mid[m] if m < N else tail).append(f)
            m += 1
        if i + 8 < len(done_order): assert m <= ready[done_order[i + 8]] - 6, "output ring overflow"
    def mfma(n):
        u, s, ks = seq[n]
        need = max(lg_x[n], lg_w[ks])
        if need > C.lg_done:
            for m in range(n + 1, min(N, n + WSTEP)):
                if m in lg_x: need = max(need, lg_x[m])
            wait(lg=need)
        x = V_XF + 4 * (n % NXF)
        for j in range(2):
            d = acc_of[(u, s)] + 4 * j; w_ = V_W + 8 * ks + 4 * j
            cc = V_BIAS + 4 * j if ks == 0 else d
            if not opts["nomfma"]: e("v_mfma_f32_16x16x32_bf16 v[%d:%d], v[%d:%d], v[%d:%d], v[%d:%d]" % (d, d + 3, x, x + 3, w_, w_ + 3, cc, cc + 3))
            if j == 0: run(mid[n])
        mf_pos[(u, s)] = len(A.out) - 1
    st["late"]()
    if start_unit:
        for q in range(4): e("v_add_u32 v%d, 0x%x, v%d" % (V_XA + q, SLOT[USLOT[start_unit]], V_XA + q))
    for n in range(LAG): xread(n)
    run(mid[-1])
    for n in range(N):
        cs[0] = n
        if n + LAG < N: xread(n + LAG)
        mfma(n)
        run(post[n])
    run(tail)
def finish():
    if STAMP:
        A.stamp()
        e("s_waitcnt vmcnt(0)")
        A.stamp()
        e("s_barrier")
        A.stamp_dump(S_WAVE)

cur[0] = "A"
e("s_setprio %d" % (opts["pb"] + 1))
prune(0)
e("s_setprio %d" % opts["pa"])
wwrite(0)
bias_ld()
run(tok_t(opts["a0"]))
prune(1)
for c in (1, 2):
    run(tok_t(opts["s%d" % c]))
    if c == 2 and opts["biasat"] == 1: bias_fix()
    wait(lg=C.lg)
    barrier("ab"[c - 1])
    run(tr_t(c - 1)); mark("t%d" % (c - 1))
    wwrite(c)
    run(tok_t(opts["a%d" % c]))
    if c == 2:
        if opts["biasat"] == 0: bias_fix()
        if opts["b2bar"]:
            wait(lg=lg_w[7])
            barrier("b2")
        e("s_setprio 3")
    prune(c + 1)
wwrite(3)
run(tok_t(opts["a3"]))
wait(lg=C.lg, vm=vx.get(0))
e("s_setprio %d" % opts["pm"])
barrier("c")
seq = []
for u in range(2):
    for ks in range(12):
        for s in range(2): seq.append((u, s, ks))
for u in range(2):
    for s in range(2):
        for ks in range(12, 16): seq.append((u, s, ks))
for u in range(2, 8):
    for s in range(2):
        for ks in range(16): seq.append((u, s, ks))
mid = {n: [] for n in range(-1, len(seq))}; post = {n: [] for n in range(len(seq))}
for k, t in enumerate(tr_t(2)): mid[k // opts["t2r"]].append(t)
DP = opts["dpos"]
post[24 - LAG - 1].append(lambda: (wait(vm=vx.get(1)), barrier("X1")))
post[DP].append(lambda: barrier("d"))
for k, t in enumerate(tr_t(3)): mid[DP + 1 + k // opts["t3r"]].append(t)
post[64 - LAG - 1].append(lambda: (wait(vm=vx.get(2)), barrier("X2")))
post[64].append(lambda: barrier("e"))
for u in range(3, 8):
    post[32 * u - LAG - 1].append(lambda u=u: barrier("Y%d" % u))
st["late"] = lambda: None
stream(seq, mid, post, 0, opts["sdel"])
finish()
e("s_endpgm")

A.lab("L_B")
cur[0] = "B"; A.NST = nst0
C.__dict__.update(fork[0]); vg.clear(); vg.update(fork[1]); vx.clear(); vx.update(fork[2])
e("s_setprio %d" % opts["pb"])
run(tok_t(opts["bi"]))
prune(0)
wwrite(0)
run(tok_t(opts["b0"]))
wait(lg=C.lg)
barrier("a")
prune(1)
wwrite(1)
run(tok_t(opts["b1"]))
wait(lg=C.lg)
barrier("b")
prune(2)
if opts["b2bar"]:
    barrier("b2")
    wwrite(2)
run(tok_t(opts["b2"]))
wait(vm=vg["g3"])
ops = prune_ops(RAW[3])
for o in ops[:opts["bcut"]]: e(o)
wait(vm=vx.get(0))
barrier("c")
if not opts["b2bar"]:
    e("s_setprio %d" % opts["pw"])
    wwrite(2)
    if opts["bcut"] >= 96: wwrite(3)
    e("s_setprio %d" % opts["pbm"])
else:
    e("s_setprio %d" % opts["pbm"])
    for o in ops[opts["bcut"]:]: e(o)
    e("s_setprio %d" % opts["pw"])
    wwrite(3)
    e("s_setprio %d" % opts["pbm"])
run(tok_t(opts["b3"]))
wait(vm=vx.get(1))
barrier("X1")
if opts["bcut"] < 96 and not opts["b2bar"]:
    for o in ops[opts["bcut"]:]: e(o)
    e("s_setprio %d" % opts["pw"])
    wwrite(3)
    e("s_setprio %d" % opts["pbm"])
run(tok_t(opts["b4"]))
wait(lg=C.lg)
barrier("d")
def paced(ts):
    for t in ts:
        t()
        if opts["bpace"] and not opts["novmem"]: wait(vm=C.vm - opts["bpace"])
if opts["nodma"]:
    xdma_t = lambda u: []
run(xdma_t(3))
wait(vm=vx.get(2))
barrier("X2")
barrier("e")
paced(xdma_t(4))
wait(vm=vx.get(3))
barrier("Y3")
paced(xdma_t(5))
wait(vm=vx.get(4))
barrier("Y4")
paced(xdma_t(6))
wait(vm=vx.get(5))
barrier("Y5")
paced(xdma_t(7))
wait(vm=vx.get(6))
barrier("Y6")
wait(vm=vx.get(7))
barrier("Y7")
assert bars["A"][:len(bars["B"])] == bars["B"], (bars["A"], bars["B"])
if STAMP:
    for nm in bars["A"][len(bars["B"]):]: barrier(nm)
    finish()
A.lab("L_end")
e("s_endpgm")
sys.stderr.write("barriers: %s ; stamps %d\nA: %s\nB: %s\n" % (" ".join(bars["A"]), A.NST, "".join("%6s" % x for x in stn["A"]), "".join("%6s" % x for x in stn["B"])))
print(A.text(vgpr=256, sgpr=102 if STAMP else 48))
```

```python
import sys
from common import *

opts = dict(stamp=0, lag=7, nxf=8, wstep=2, st="nt", xf="", ctouch=1, novalu=0, nomfma=0, novmem=0, real=0,
            uo="01234567,45670123,01234567,45670123", cpos=3, krot=0, sdel=115, nost=0, noepi=0, nodma=0, nobar=0, stmid=1,
            ci="g0+bar+g1", bi="none", a0="g2+g3", b0="g2+g3", a1="U0h0", b1="U0h1", a2="none", b2="U1h1", pa=1, pb=2, dpos=36, bcut=64, dstep=2, bpace=3, s1="none", s2="none", b3="U2", b4="none", pm=2, pw=3, pbm=0, sstep=2, t2r=1, t3r=2, biasat=1, stl="nt", nl=0, a3="U1h0", b2bar=1, xfn=8, wf="")
for a in sys.argv[1:]:
    k, v = a.split("=")
    assert k in opts, k
    opts[k] = int(v) if v.lstrip("-").isdigit() else v
STAMP = opts["stamp"]; LAG = opts["lag"]; NXF = opts["nxf"]; WSTEP = opts["wstep"]
STF = opts["st"].replace("_", " ") if opts["st"] != "none" else ""
XF = opts["xf"].replace("_", " ")
CPOS = opts["cpos"]
UO = [[int(c) for c in s] for s in opts["uo"].split(",")]
assert all(sorted(u) == list(range(8)) for u in UO) and len(UO) == 4

A = Asm(256, 512, 163840, stamp=bool(STAMP), waves=8)
e = A.e
A.REAL = bool(opts["real"])

cur = ["A"]
class Cnt:
    def reset(self): self.vm = 0; self.lg = 0; self.vm_done = 0; self.lg_done = 0
C = Cnt(); C.reset()
def vmem(s):
    if opts["novmem"] and "load" in s and (C.vm > 9 or "lds" in s): return C.vm
    e(s); C.vm += 1; return C.vm
def lds(s):
    e(s); C.lg += 1; return C.lg
def wait(vm=None, lg=None):
    parts = []
    if vm is not None and vm > C.vm_done:
        n = C.vm - vm
        assert n <= 63
        parts.append("vmcnt(%d)" % n); C.vm_done = vm
    if lg is not None and lg > C.lg_done:
        n = min(C.lg - lg, 15)
        parts.append("lgkmcnt(%d)" % n); C.lg_done = C.lg - n
    if parts: e("s_waitcnt " + " ".join(parts))
bars = {"A": [], "B": []}
def barrier(name):
    bars[cur[0]].append(name)
    if STAMP and (name in "abc" or (cur[0] == "B" and name in ("X1", "d"))): A.stamp(); stn[cur[0]].append(name)
    if not (opts["nobar"] and name not in ("a", "b", "b2", "c")): e("s_barrier    ; " + name)
    if STAMP == 1 and cur[0] == "B" and name not in "ab": A.stamp(); stn[cur[0]].append(name + "+")
stn = {"A": [], "B": []}
def mark(n):
    if STAMP == 2: A.stamp(); stn[cur[0]].append(n)
def run(ts):
    for t in ts: t()

SX, SW, SB, SO = 8, 12, 16, 20
S_WAVE, S_NQ, S_MH, S_N4B, S_LB, S_T0, S_T1, S_T2 = 24, 25, 26, 27, 28, 29, 30, 31
S_TB = 32
S_CH = 40
S_WS, S_XS, S_OS = 3, 4, 5
V_C8 = 0
V_WW = 1
V_TR = 5
V_SEL = 6; V_OOFF = 7
V_XA = 8
V_XOFF = 12
V_T = 16
V_BIAS = 24
V_XF = 32
V_OUT = 64
V_ACC = 96
V_W = 128
RAW = [224, 240, 64, 96]
V_L, V_WOFF, V_BOFF = 32, 33, 34
t0, t1, t2, t3, t4, t5 = 44, 45, 46, 47, 48, 49
V_CT = 50
V_TR2 = 95
SLOT = [0, 32768, 65536, 98304, 131072]
USLOT = [0, 1, 2, 3, 4, 0, 1, 2]
assert 32 + 4 * NXF <= 64 and LAG < NXF

def prune_ops(raw):
    s = []
    for d in range(4):
        a = [raw + 4 * i + d for i in range(4)]
        g = [V_T + i for i in range(4)]
        h1, l1, h2, l2 = [V_T + 4 + i for i in range(4)]
        for i in range(4): s.append("v_or_b32 v%d, v%d, v%d" % (g[i], V_C8, a[i]))
        s.append("v_pk_max_u16 v%d, v%d, v%d" % (h1, g[0], g[1]))
        s.append("v_pk_min_u16 v%d, v%d, v%d" % (l1, g[0], g[1]))
        s.append("v_pk_max_u16 v%d, v%d, v%d" % (h2, g[2], g[3]))
        s.append("v_pk_min_u16 v%d, v%d, v%d" % (l2, g[2], g[3]))
        s.append("v_pk_min_u16 v%d, v%d, v%d" % (h1, h1, h2))
        s.append("v_pk_max_u16 v%d, v%d, v%d" % (l1, l1, l2))
        s.append("v_pk_max_u16 v%d, v%d, v%d" % (h1, h1, l1))
        s.append("v_xor_b32 v%d, v%d, v%d" % (h1, V_C8, h1))
        for i in range(4): s.append("v_sub_u32 v%d, v%d, v%d" % (g[i], g[i], h1))
        for i in range(4): s.append("v_pk_ashrrev_i16 v%d, 15, v%d op_sel_hi:[0,1]" % (g[i], g[i]))
        for i in range(4): s.append("v_and_b32 v%d, v%d, v%d" % (a[i], g[i], a[i]))
    if opts["novalu"]: s = ["; " + o for o in s]
    return s
vg = {}
GR = {"A": [(0, 0), (1, 0), (2, 0), (2, 1)], "B": [(0, 1), (1, 1), (3, 0), (3, 1)]}
def own_par(): return 0 if cur[0] == "A" else 1
def wload1(key, g, i):
    r = RAW[g] + 4 * i
    c, par = GR[cur[0]][g]
    so = S_CH + c; vo = V_WOFF
    if par != own_par():
        vo = V_WOFF + 2
        if i == 0: e("v_xor_b32 v%d, 0x2000, v%d" % (vo, V_WOFF))
    vg[key] = vmem("buffer_load_dwordx4 v[%d:%d], v%d, s[%d:%d], s%d offen offset:%d %s" % (r, r + 3, vo, SW, SW + 3, so, i * 1024, opts["wf"].replace("_", " ")))
def wload_t(key, raw, g): return [lambda i=i: wload1(key, g, i) for i in range(4)]
ww_base = {"A": 0, "B": 0}
def wwrite(g):
    c, par = GR[cur[0]][g]
    want = (c & 1) * 32768 + (par - own_par()) * 2048
    d = want - ww_base[cur[0]]
    if par == 1 and d or d < 0:
        for i in range(4): e("v_%s_u32 v%d, 0x%x, v%d" % ("add" if d > 0 else "subrev", V_WW + i, abs(d), V_WW + i))
        ww_base[cur[0]] = want; d = 0
    for i in range(4):
        r = RAW[g] + 4 * i
        if par == 0:
            w = lds("ds_write_b128 v%d, v[%d:%d] offset:%d" % (V_WW + i, r, r + 3, i * 256 + d))
        else:
            w = lds("ds_write2_b64 v%d, v[%d:%d], v[%d:%d] offset0:%d offset1:%d" % (V_WW + i, r, r + 1, r + 2, r + 3, i * 32 + 1, i * 32))
    mark("w%d" % g)
    return w
vx = {}
def xdma1(u, a, i):
    if i == 0:
        e("s_add_u32 m0, s%d, 0x%x" % (S_LB, SLOT[USLOT[u]] + a * 16384))
        if a: e("s_add_u32 s%d, s%d, 0x4000" % (S_XS, S_TB + u))
        else: e("s_nop 0")
    s = S_XS if a else S_TB + u
    vx[u] = vmem("buffer_load_dwordx4 v%d, s[%d:%d], s%d offen offset:%d %s lds" % (V_XOFF + i, SX, SX + 3, s, i * 1024, XF if u < opts["xfn"] else ""))
def xdma_t(u): return [lambda a=a, i=i: xdma1(u, a, i) for a in range(2) for i in range(4)]
def tok_t(tok):
    out = []
    for t in tok.split("+"):
        if t == "" or t == "none": continue
        if t[0] == "w": out.append(lambda t=t: wait(vm=vg[t[1:]] if t[1] != "U" else vx[int(t[2])]))
        elif t[0] == "g": c = int(t[1]); out += wload_t(t, RAW[c], c)
        elif len(t) == 2: out += xdma_t(int(t[1]))
        else: out += xdma_t(int(t[1]))[4 * int(t[3]):4 * int(t[3]) + 4]
    return out
lg_w = {}
def trread(c, kq, j, q):
    ks = 4 * c + kq
    r = V_W + 8 * ks + 4 * j + 2 * q
    lg_w[ks] = lds("ds_read_b64_tr_b16 v[%d:%d], v%d offset:%d" % (r, r + 1, V_TR2 if j else V_TR, kq * 8192 + q * 1024 + (c & 1) * 32768))
def tr_t(c): return [lambda kq=kq, j=j, q=q: trread(c, kq, j, q) for kq in range(4) for j in range(2) for q in range(2)]
def prune(c):
    wait(vm=vg["g%d" % c])
    if STAMP == 2 or (STAMP and c == 0): A.stamp(); stn[cur[0]].append("P%d" % c)
    for o in prune_ops(RAW[c]): e(o)
    mark("p%d" % c)

e("s_cmp_ge_u32 s2, 256")
e("s_cbranch_scc1 L_end")
A.stamp()
e("s_load_dwordx4 s[4:7], s[0:1], 0")
e("s_load_dwordx2 s[%d:%d], s[0:1], 16" % (SB, SB + 1))
e("s_load_dwordx2 s[%d:%d], s[0:1], 24" % (SO, SO + 1))
if opts["ctouch"]:
    e("s_getpc_b64 s[%d:%d]" % (S_T1, S_T2))
    A.lab("L_pc")
    e("v_lshlrev_b32 v%d, 7, v0" % V_CT)
    e("v_min_u32 v%d, L_end-L_pc, v%d" % (V_CT, V_CT))
    e("v_mov_b32 v%d, s%d" % (V_CT + 1, S_T2))
    e("v_add_co_u32 v%d, vcc, s%d, v%d" % (V_CT, S_T1, V_CT))
    e("v_lshrrev_b32 v%d, 6, v0" % t0)
    e("v_and_b32 v%d, 63, v0" % V_L)
    e("v_addc_co_u32 v%d, vcc, 0, v%d, vcc" % (V_CT + 1, V_CT + 1))
    if opts["ctouch"] == 1: vmem("global_load_dword v%d, v[%d:%d], off" % (V_CT + 2, V_CT, V_CT + 1))
else:
    e("v_lshrrev_b32 v%d, 6, v0" % t0)
    e("v_and_b32 v%d, 63, v0" % V_L)
e("v_readfirstlane_b32 s%d, v%d" % (S_WAVE, t0))
e("s_lshr_b32 s%d, s2, 3" % S_T1)
e("s_and_b32 s%d, s%d, 3" % (S_T2, S_T1))
e("v_and_b32 v%d, 15, v%d" % (t0, V_L))
e("v_lshrrev_b32 v%d, 4, v%d" % (t1, V_L))
e("s_lshl_b32 s%d, s%d, 8" % (S_N4B, S_T2))
e("s_and_b32 s%d, s%d, 3" % (S_NQ, S_WAVE))
e("s_lshr_b32 s%d, s%d, 2" % (S_MH, S_WAVE))
e("s_lshl_b32 s%d, s%d, 2" % (S_T0, S_NQ))
e("s_add_u32 s%d, s%d, s%d" % (S_T0, S_T0, S_MH))
e("s_lshl_b32 s%d, s%d, 1" % (S_T0, S_T0))
e("v_and_b32 v%d, 2, v%d" % (t5, t1))
e("v_add_u32 v%d, v%d, v%d" % (t5, t5, t1))
e("v_add_u32 v%d, s%d, v%d" % (t5, S_T0, t5))
e("v_lshlrev_b32 v%d, 12, v%d" % (V_WOFF, t5))
e("v_lshl_add_u32 v%d, v%d, 4, v%d" % (V_WOFF, t0, V_WOFF))
e("v_add_u32 v%d, s%d, v%d" % (V_WOFF, S_N4B, V_WOFF))
e("s_lshr_b32 s%d, s%d, 2" % (S_T1, S_T1))
if opts["krot"]: e("s_and_b32 s%d, s%d, %d" % (S_WS, S_T1, opts["krot"]))
else: e("s_mov_b32 s%d, 0" % S_WS)
e("s_lshl_b32 s%d, s%d, 17" % (S_CH, S_WS))
for c in range(1, 4): e("s_xor_b32 s%d, s%d, 0x%x" % (S_CH + c, S_CH, c << 17))
e("s_mov_b32 s%d, 0x%x" % (SW + 2, 512 * 1024))
e("s_mov_b32 s%d, 0x00020000" % (SW + 3))
def pk(u): return sum(x << (4 * i) for i, x in enumerate(u))
e("s_mov_b32 s%d, 0x%x" % (S_LB, pk(UO[0])))
for q in range(1, 4):
    if UO[q] == UO[0]: continue
    e("s_cmp_eq_u32 s%d, %d" % (S_T2, q))
    e("s_cselect_b32 s%d, 0x%x, s%d" % (S_LB, pk(UO[q]), S_LB))
e("s_and_b32 s%d, s2, 7" % S_T0)
e("s_lshl_b32 s%d, s%d, 3" % (S_T1, S_T1))
e("s_add_u32 s%d, s%d, s%d" % (S_T1, S_T1, S_T0))
e("s_lshl_b32 s%d, s%d, 3" % (S_T1, S_T1))
e("s_waitcnt lgkmcnt(0)")
e("s_mov_b32 s%d, s6" % SW)
e("s_mov_b32 s%d, s7" % (SW + 1))
A.stamp()
for tok in opts["ci"].split("+"):
    if tok == "bar":
        if opts["ctouch"] == 2: vmem("global_load_dword v%d, v[%d:%d], off" % (V_CT + 2, V_CT, V_CT + 1))
        e("s_barrier")
    else: run(wload_t(tok, RAW[int(tok[1])], int(tok[1])))
e("s_mov_b32 s%d, s4" % SX)
e("s_mov_b32 s%d, s5" % (SX + 1))
for d, nb in ((SX, 16384 * 1024), (SO, 16384 * 1024), (SB, 1024)):
    e("s_mov_b32 s%d, 0x%x" % (d + 2, nb))
    e("s_mov_b32 s%d, 0x00020000" % (d + 3))
for t in range(8):
    e("s_bfe_u32 s%d, s%d, 0x%x" % (S_TB + t, S_LB, (3 << 16) | (4 * t)))
    e("s_add_u32 s%d, s%d, s%d" % (S_TB + t, S_TB + t, S_T1))
    e("s_lshl_b32 s%d, s%d, 15" % (S_TB + t, S_TB + t))
e("s_lshl_b32 s%d, s%d, 12" % (S_LB, S_NQ))
e("s_lshl_b32 s%d, s%d, 4" % (S_WS, S_WS))
e("s_lshl_b32 s%d, s%d, 2" % (S_T0, S_NQ))
e("s_or_b32 s%d, s%d, s%d" % (S_T0, S_T0, S_WS))
e("v_xor_b32 v%d, s%d, v%d" % (t2, S_T0, V_L))
e("v_lshlrev_b32 v%d, 4, v%d" % (t2, t2))
e("v_add_u32 v%d, s%d, v%d" % (V_XOFF, S_LB, t2))
for i in range(1, 4): e("v_xor_b32 v%d, %d, v%d" % (V_XOFF + i, 16 * i, V_XOFF))
e("v_lshlrev_b32 v%d, 10, v%d" % (t3, t5))
e("v_lshl_add_u32 v%d, v%d, 4, v%d" % (t3, t0, t3))
e("v_add_u32 v%d, 0x%x, v%d" % (V_WW, SLOT[3], t3))
for i in range(1, 4):
    e("v_xor_b32 v%d, %d, v%d" % (V_WW + i, 64 * i, V_WW))
e("v_mov_b32 v%d, 0x80008000" % V_C8)
e("v_xor_b32 v%d, v%d, v%d" % (t2, t1, t0))
e("v_lshlrev_b32 v%d, 4, v%d" % (t2, t2))
e("v_lshl_add_u32 v%d, v%d, 10, v%d" % (V_XA, t0, t2))
for q in range(1, 4): e("v_xor_b32 v%d, %d, v%d" % (V_XA + q, 64 * q, V_XA))
e("v_lshrrev_b32 v%d, 2, v%d" % (t2, t0))
e("v_lshl_add_u32 v%d, v%d, 3, v%d" % (t4, t1, t2))
e("v_lshlrev_b32 v%d, 8, v%d" % (V_TR, t4))
e("v_xor_b32 v%d, s%d, v%d" % (t4, S_NQ, t2))
e("v_lshl_add_u32 v%d, v%d, 6, v%d" % (V_TR, t4, V_TR))
e("v_and_b32 v%d, 3, v%d" % (t4, V_L))
e("v_lshl_add_u32 v%d, v%d, 4, v%d" % (V_TR, t4, V_TR))
e("v_and_b32 v%d, 1, v%d" % (t3, t1))
e("v_lshl_add_u32 v%d, v%d, 3, v%d" % (V_TR, t3, V_TR))
e("v_add_u32 v%d, 0x%x, v%d" % (V_TR, SLOT[3], V_TR))
e("v_xor_b32 v%d, 8, v%d" % (V_TR2, V_TR))
e("s_lshl_b32 s%d, s%d, 6" % (S_T0, S_NQ))
e("s_add_u32 s%d, s%d, s%d" % (S_T0, S_T0, S_N4B))
e("v_lshlrev_b32 v%d, 4, v%d" % (t2, t2))
e("v_add_u32 v%d, s%d, v%d" % (t2, S_T0, t2))
e("v_lshl_add_u32 v%d, v%d, 1, v%d" % (V_BOFF, t4, t2))
e("v_and_b32 v%d, 1, v%d" % (t3, V_L))
e("v_lshl_add_u32 v%d, v%d, 3, v%d" % (t2, t3, t2))
e("v_and_b32 v%d, 2, v%d" % (t4, V_L))
e("v_lshl_add_u32 v%d, v%d, 1, v%d" % (t2, t4, t2))
e("v_lshl_add_u32 v%d, v%d, 12, v%d" % (V_OOFF, t1, t2))
e("v_sub_u32 v%d, 0, v%d" % (t3, t3))
e("v_and_b32 v%d, 0x06060606, v%d" % (t3, t3))
e("v_xor_b32 v%d, 0x05040100, v%d" % (V_SEL, t3))
e("s_cmp_lg_u32 s%d, 0" % S_MH)
e("s_cbranch_scc1 L_B")
nst0 = A.NST
fork = (dict(C.__dict__), dict(vg), dict(vx))
st = {}
def bias_ld():
    vmem("buffer_load_ushort v%d, v%d, s[%d:%d], 0 offen" % (V_BIAS, V_BOFF, SB, SB + 3))
    st["vb"] = vmem("buffer_load_ushort v%d, v%d, s[%d:%d], 0 offen offset:8" % (V_BIAS + 4, V_BOFF, SB, SB + 3))
def bias_fix():
    wait(vm=st["vb"])
    for j in range(2):
        for r in (3, 2, 1, 0): e("v_lshlrev_b32 v%d, 16, v%d" % (V_BIAS + 4 * j + r, V_BIAS + 4 * j))

def stream(seq, mid, post, start_unit, sdel):
    N = len(seq)
    lg_x = {}; mf_pos = {}
    order = []
    for u, s, ks in seq:
        if (u, s) not in order: order.append((u, s))
    acc_of = {t: V_ACC + 8 * (i % 4) for i, t in enumerate(order)}
    sub_end = {(u, s): n for n, (u, s, ks) in enumerate(seq) if ks == 15}
    done_order = sorted(sub_end, key=lambda t: sub_end[t])
    out_of = {t: V_OUT + 4 * (i % 8) for i, t in enumerate(done_order)}
    cs = [-1]
    def xread(n):
        u, s, ks = seq[n]
        q = ks & 3
        r = V_XF + 4 * (n % NXF)
        lg_x[n] = lds("ds_read_b128 v[%d:%d], v%d offset:%d" % (r, r + 3, V_XA + q, s * 16384 + (ks >> 2) * 256))
        nxt = [m for m in range(n + 1, N) if (seq[m][2] & 3) == q]
        if nxt and seq[nxt[0]][0] != u:
            d = SLOT[USLOT[seq[nxt[0]][0]]] - SLOT[USLOT[u]]
            op = "v_add_u32 v%d, 0x%x, v%d" % (V_XA + q, d, V_XA + q) if d > 0 else "v_subrev_u32 v%d, 0x%x, v%d" % (V_XA + q, -d, V_XA + q)
            mid[cs[0]].append(lambda: e(op))
    def epi_ops(t):
        d = acc_of[t]; o = out_of[t]
        def cvt(r):
            gap = len(A.out) - mf_pos[t] - 1
            if gap < 8: e("s_nop %d" % (7 - gap)); mf_pos[t] -= 8
            e("v_cvt_pk_bf16_f32 v%d, v%d, v%d" % (o + r, d + r, d + 4 + r))
        return ([lambda r=r: cvt(r) for r in range(4)]
              + [lambda r=r: e("v_mov_b32_dpp v%d, v%d quad_perm:[1,0,3,2] row_mask:0xf bank_mask:0xf" % (V_T + r, o + r)) for r in range(4)]
              + [lambda r=r: e("v_perm_b32 v%d, v%d, v%d, v%d" % (o + r, V_T + r, o + r, V_SEL)) for r in range(4)])
    def store_ops(t):
        u, s = t; o = out_of[t]
        def sto(r):
            if r == 0 and s: e("s_add_u32 s%d, s%d, 0x4000" % (S_OS, S_TB + u))
            vmem("buffer_store_dword v%d, v%d, s[%d:%d], s%d offen offset:%d %s" % (o + r, V_OOFF, SO, SO + 3, S_OS if s else S_TB + u, r * 1024, STF if done_order.index(t) < len(done_order) - opts["nl"] else opts["stl"].replace("_", " ").replace("none", "")))
        fs = [lambda r=r: sto(r) for r in range(4)]
        for f in fs: f.vm = 1
        return fs
    tail = []
    free = 0; ready = {}
    for t in done_order:
        n = max(sub_end[t] + CPOS, free)
        ops = epi_ops(t) if not opts["noepi"] else []
        for k in range(6):
            (mid[n + k] if n + k < N else tail).extend(ops[2 * k:2 * k + 2])
        free = n + 6
        nxt_use = [m for m in range(sub_end[t] + 1, N) if acc_of[seq[m][:2]] == acc_of[t]]
        assert not nxt_use or nxt_use[0] > n + 2, t
        ready[t] = n + 6
    m = sdel
    for i, t in enumerate(done_order):
        m = max(m, ready[t])
        for f in (store_ops(t) if not opts["nost"] else []):
            backlog = i + 1 < len(done_order) and ready[done_order[i + 1]] <= m
            while m < N and mid[m] and not (backlog and opts["sstep"] == 1): m += 1
            (mid[m] if m < N else tail).append(f)
            m += 1
        if i + 8 < len(done_order): assert m <= ready[done_order[i + 8]] - 6, "output ring overflow"
    def mfma(n):
        u, s, ks = seq[n]
        need = max(lg_x[n], lg_w[ks])
        if need > C.lg_done:
            for m in range(n + 1, min(N, n + WSTEP)):
                if m in lg_x: need = max(need, lg_x[m])
            wait(lg=need)
        x = V_XF + 4 * (n % NXF)
        for j in range(2):
            d = acc_of[(u, s)] + 4 * j; w_ = V_W + 8 * ks + 4 * j
            cc = V_BIAS + 4 * j if ks == 0 else d
            if not opts["nomfma"]: e("v_mfma_f32_16x16x32_bf16 v[%d:%d], v[%d:%d], v[%d:%d], v[%d:%d]" % (d, d + 3, x, x + 3, w_, w_ + 3, cc, cc + 3))
            if j == 0: run(mid[n])
        mf_pos[(u, s)] = len(A.out) - 1
    st["late"]()
    if start_unit:
        for q in range(4): e("v_add_u32 v%d, 0x%x, v%d" % (V_XA + q, SLOT[USLOT[start_unit]], V_XA + q))
    for n in range(LAG): xread(n)
    run(mid[-1])
    for n in range(N):
        cs[0] = n
        if n + LAG < N: xread(n + LAG)
        mfma(n)
        run(post[n])
    run(tail)
def finish():
    if STAMP:
        A.stamp()
        e("s_waitcnt vmcnt(0)")
        A.stamp()
        e("s_barrier")
        A.stamp_dump(S_WAVE)

cur[0] = "A"
e("s_setprio %d" % (opts["pb"] + 1))
prune(0)
e("s_setprio %d" % opts["pa"])
wwrite(0)
bias_ld()
run(tok_t(opts["a0"]))
prune(1)
for c in (1, 2):
    run(tok_t(opts["s%d" % c]))
    if c == 2 and opts["biasat"] == 1: bias_fix()
    wait(lg=C.lg)
    barrier("ab"[c - 1])
    run(tr_t(c - 1)); mark("t%d" % (c - 1))
    wwrite(c)
    run(tok_t(opts["a%d" % c]))
    if c == 2:
        if opts["biasat"] == 0: bias_fix()
        if opts["b2bar"]:
            wait(lg=lg_w[7])
            barrier("b2")
        e("s_setprio 3")
    prune(c + 1)
wwrite(3)
run(tok_t(opts["a3"]))
wait(lg=C.lg, vm=vx.get(0))
e("s_setprio %d" % opts["pm"])
barrier("c")
seq = []
for u in range(2):
    for ks in range(12):
        for s in range(2): seq.append((u, s, ks))
for u in range(2):
    for s in range(2):
        for ks in range(12, 16): seq.append((u, s, ks))
for u in range(2, 8):
    for s in range(2):
        for ks in range(16): seq.append((u, s, ks))
mid = {n: [] for n in range(-1, len(seq))}; post = {n: [] for n in range(len(seq))}
for k, t in enumerate(tr_t(2)): mid[k // opts["t2r"]].append(t)
DP = opts["dpos"]
post[24 - LAG - 1].append(lambda: (wait(vm=vx.get(1)), barrier("X1")))
post[DP].append(lambda: barrier("d"))
for k, t in enumerate(tr_t(3)): mid[DP + 1 + k // opts["t3r"]].append(t)
post[64 - LAG - 1].append(lambda: (wait(vm=vx.get(2)), barrier("X2")))
post[64].append(lambda: barrier("e"))
for u in range(3, 8):
    post[32 * u - LAG - 1].append(lambda u=u: barrier("Y%d" % u))
st["late"] = lambda: None
stream(seq, mid, post, 0, opts["sdel"])
finish()
e("s_endpgm")

A.lab("L_B")
cur[0] = "B"; A.NST = nst0
C.__dict__.update(fork[0]); vg.clear(); vg.update(fork[1]); vx.clear(); vx.update(fork[2])
e("s_setprio %d" % opts["pb"])
run(tok_t(opts["bi"]))
prune(0)
wwrite(0)
run(tok_t(opts["b0"]))
wait(lg=C.lg)
barrier("a")
prune(1)
wwrite(1)
run(tok_t(opts["b1"]))
wait(lg=C.lg)
barrier("b")
prune(2)
if opts["b2bar"]:
    barrier("b2")
    wwrite(2)
run(tok_t(opts["b2"]))
wait(vm=vg["g3"])
ops = prune_ops(RAW[3])
for o in ops[:opts["bcut"]]: e(o)
wait(vm=vx.get(0))
barrier("c")
if not opts["b2bar"]:
    e("s_setprio %d" % opts["pw"])
    wwrite(2)
    if opts["bcut"] >= 96: wwrite(3)
    e("s_setprio %d" % opts["pbm"])
else:
    e("s_setprio %d" % opts["pbm"])
    for o in ops[opts["bcut"]:]: e(o)
    e("s_setprio %d" % opts["pw"])
    wwrite(3)
    e("s_setprio %d" % opts["pbm"])
run(tok_t(opts["b3"]))
wait(vm=vx.get(1))
barrier("X1")
if opts["bcut"] < 96 and not opts["b2bar"]:
    for o in ops[opts["bcut"]:]: e(o)
    e("s_setprio %d" % opts["pw"])
    wwrite(3)
    e("s_setprio %d" % opts["pbm"])
run(tok_t(opts["b4"]))
wait(lg=C.lg)
barrier("d")
def paced(ts):
    for t in ts:
        t()
        if opts["bpace"] and not opts["novmem"]: wait(vm=C.vm - opts["bpace"])
if opts["nodma"]:
    xdma_t = lambda u: []
run(xdma_t(3))
wait(vm=vx.get(2))
barrier("X2")
barrier("e")
paced(xdma_t(4))
wait(vm=vx.get(3))
barrier("Y3")
paced(xdma_t(5))
wait(vm=vx.get(4))
barrier("Y4")
paced(xdma_t(6))
wait(vm=vx.get(5))
barrier("Y5")
paced(xdma_t(7))
wait(vm=vx.get(6))
barrier("Y6")
wait(vm=vx.get(7))
barrier("Y7")
assert bars["A"][:len(bars["B"])] == bars["B"], (bars["A"], bars["B"])
if STAMP:
    for nm in bars["A"][len(bars["B"]):]: barrier(nm)
    finish()
A.lab("L_end")
e("s_endpgm")
sys.stderr.write("barriers: %s ; stamps %d\nA: %s\nB: %s\n" % (" ".join(bars["A"]), A.NST, "".join("%6s" % x for x in stn["A"]), "".join("%6s" % x for x in stn["B"])))
print(A.text(vgpr=256, sgpr=102 if STAMP else 48))
```

```python
import sys
from common import *

opts = dict(stamp=0, lag=7, nxf=8, wstep=2, st="nt", xf="", ctouch=1, novalu=0, nomfma=0, novmem=0, real=0,
            uo="01234567,45670123,01234567,45670123", cpos=3, krot=0, sdel=115, nost=0, noepi=0, nodma=0, nobar=0, stmid=1,
            ci="g0+bar+g1", bi="none", a0="g2+g3", b0="g2+g3", a1="U0h0", b1="U0h1", a2="none", b2="U1h1", pa=1, pb=2, dpos=36, bcut=64, dstep=2, bpace=3, s1="none", s2="none", b3="U2", b4="none", pm=2, pw=3, pbm=0, sstep=2, t2r=1, t3r=2, biasat=1, stl="nt", nl=0, a3="U1h0", b2bar=1, xfn=8, wf="", map=0, dsched=0, rpos=103, spos=135)
for a in sys.argv[1:]:
    k, v = a.split("=")
    assert k in opts, k
    opts[k] = int(v) if v.lstrip("-").isdigit() else v
STAMP = opts["stamp"]; LAG = opts["lag"]; NXF = opts["nxf"]; WSTEP = opts["wstep"]
STF = opts["st"].replace("_", " ") if opts["st"] != "none" else ""
XF = opts["xf"].replace("_", " ")
CPOS = opts["cpos"]
UO = [[int(c) for c in s] for s in opts["uo"].split(",")]
assert all(sorted(u) == list(range(8)) for u in UO) and len(UO) == 4

A = Asm(256, 512, 163840, stamp=bool(STAMP), waves=8)
e = A.e
A.REAL = bool(opts["real"])

cur = ["A"]
class Cnt:
    def reset(self): self.vm = 0; self.lg = 0; self.vm_done = 0; self.lg_done = 0
C = Cnt(); C.reset()
def vmem(s):
    if opts["novmem"] and "load" in s and (C.vm > 9 or "lds" in s): return C.vm
    e(s); C.vm += 1; return C.vm
def lds(s):
    e(s); C.lg += 1; return C.lg
def wait(vm=None, lg=None):
    parts = []
    if vm is not None and vm > C.vm_done:
        n = C.vm - vm
        assert n <= 63
        parts.append("vmcnt(%d)" % n); C.vm_done = vm
    if lg is not None and lg > C.lg_done:
        n = min(C.lg - lg, 15)
        parts.append("lgkmcnt(%d)" % n); C.lg_done = C.lg - n
    if parts: e("s_waitcnt " + " ".join(parts))
bars = {"A": [], "B": []}
def barrier(name):
    bars[cur[0]].append(name)
    if STAMP and (name in "abc" or (cur[0] == "B" and name in ("X1", "d"))): A.stamp(); stn[cur[0]].append(name)
    if not (opts["nobar"] and name not in ("a", "b", "b2", "c")): e("s_barrier    ; " + name)
    if STAMP == 1 and cur[0] == "B" and name not in "ab": A.stamp(); stn[cur[0]].append(name + "+")
stn = {"A": [], "B": []}
def mark(n):
    if STAMP == 2: A.stamp(); stn[cur[0]].append(n)
def run(ts):
    for t in ts: t()

SX, SW, SB, SO = 8, 12, 16, 20
S_WAVE, S_NQ, S_MH, S_N4B, S_LB, S_T0, S_T1, S_T2 = 24, 25, 26, 27, 28, 29, 30, 31
S_TB = 32
S_CH = 40
S_WS, S_XS, S_OS = 3, 4, 5
V_C8 = 0
V_WW = 1
V_TR = 5
V_SEL = 6; V_OOFF = 7
V_XA = 8
V_XOFF = 12
V_T = 16
V_BIAS = 24
V_XF = 32
V_OUT = 64
V_ACC = 96
V_W = 128
RAW = [224, 240, 64, 96]
V_L, V_WOFF, V_BOFF = 32, 33, 34
t0, t1, t2, t3, t4, t5 = 44, 45, 46, 47, 48, 49
V_CT = 50
V_TR2 = 95
SLOT = [0, 32768, 65536, 98304, 131072]
USLOT = [0, 1, 2, 3, 4, 0, 1, 2]
assert 32 + 4 * NXF <= 64 and LAG < NXF

def prune_ops(raw):
    s = []
    for d in range(4):
        a = [raw + 4 * i + d for i in range(4)]
        g = [V_T + i for i in range(4)]
        h1, l1, h2, l2 = [V_T + 4 + i for i in range(4)]
        for i in range(4): s.append("v_or_b32 v%d, v%d, v%d" % (g[i], V_C8, a[i]))
        s.append("v_pk_max_u16 v%d, v%d, v%d" % (h1, g[0], g[1]))
        s.append("v_pk_min_u16 v%d, v%d, v%d" % (l1, g[0], g[1]))
        s.append("v_pk_max_u16 v%d, v%d, v%d" % (h2, g[2], g[3]))
        s.append("v_pk_min_u16 v%d, v%d, v%d" % (l2, g[2], g[3]))
        s.append("v_pk_min_u16 v%d, v%d, v%d" % (h1, h1, h2))
        s.append("v_pk_max_u16 v%d, v%d, v%d" % (l1, l1, l2))
        s.append("v_pk_max_u16 v%d, v%d, v%d" % (h1, h1, l1))
        s.append("v_xor_b32 v%d, v%d, v%d" % (h1, V_C8, h1))
        for i in range(4): s.append("v_sub_u32 v%d, v%d, v%d" % (g[i], g[i], h1))
        for i in range(4): s.append("v_pk_ashrrev_i16 v%d, 15, v%d op_sel_hi:[0,1]" % (g[i], g[i]))
        for i in range(4): s.append("v_and_b32 v%d, v%d, v%d" % (a[i], g[i], a[i]))
    if opts["novalu"]: s = ["; " + o for o in s]
    return s
vg = {}
GR = {"A": [(0, 0), (1, 0), (2, 0), (2, 1)], "B": [(0, 1), (1, 1), (3, 0), (3, 1)]}
def own_par(): return 0 if cur[0] == "A" else 1
def wload1(key, g, i):
    r = RAW[g] + 4 * i
    c, par = GR[cur[0]][g]
    so = S_CH + c; vo = V_WOFF
    if par != own_par():
        vo = V_WOFF + 2
        if i == 0: e("v_xor_b32 v%d, 0x2000, v%d" % (vo, V_WOFF))
    vg[key] = vmem("buffer_load_dwordx4 v[%d:%d], v%d, s[%d:%d], s%d offen offset:%d %s" % (r, r + 3, vo, SW, SW + 3, so, i * 1024, opts["wf"].replace("_", " ")))
def wload_t(key, raw, g): return [lambda i=i: wload1(key, g, i) for i in range(4)]
ww_base = {"A": 0, "B": 0}
def wwrite(g):
    c, par = GR[cur[0]][g]
    want = (c & 1) * 32768 + (par - own_par()) * 2048
    d = want - ww_base[cur[0]]
    if par == 1 and d or d < 0:
        for i in range(4): e("v_%s_u32 v%d, 0x%x, v%d" % ("add" if d > 0 else "subrev", V_WW + i, abs(d), V_WW + i))
        ww_base[cur[0]] = want; d = 0
    for i in range(4):
        r = RAW[g] + 4 * i
        if par == 0:
            w = lds("ds_write_b128 v%d, v[%d:%d] offset:%d" % (V_WW + i, r, r + 3, i * 256 + d))
        else:
            w = lds("ds_write2_b64 v%d, v[%d:%d], v[%d:%d] offset0:%d offset1:%d" % (V_WW + i, r, r + 1, r + 2, r + 3, i * 32 + 1, i * 32))
    mark("w%d" % g)
    return w
vx = {}
def xdma1(u, a, i):
    if i == 0:
        e("s_add_u32 m0, s%d, 0x%x" % (S_LB, SLOT[USLOT[u]] + a * 16384))
        if a: e("s_add_u32 s%d, s%d, 0x4000" % (S_XS, S_TB + u))
        else: e("s_nop 0")
    s = S_XS if a else S_TB + u
    vx[u] = vmem("buffer_load_dwordx4 v%d, s[%d:%d], s%d offen offset:%d %s lds" % (V_XOFF + i, SX, SX + 3, s, i * 1024, XF if u < opts["xfn"] else ""))
def xdma_t(u): return [lambda a=a, i=i: xdma1(u, a, i) for a in range(2) for i in range(4)]
def tok_t(tok):
    out = []
    for t in tok.split("+"):
        if t == "" or t == "none": continue
        if t[0] == "w": out.append(lambda t=t: wait(vm=vg[t[1:]] if t[1] != "U" else vx[int(t[2])]))
        elif t[0] == "g": c = int(t[1]); out += wload_t(t, RAW[c], c)
        elif len(t) == 2: out += xdma_t(int(t[1]))
        else: out += xdma_t(int(t[1]))[4 * int(t[3]):4 * int(t[3]) + 4]
    return out
lg_w = {}
def trread(c, kq, j, q):
    ks = 4 * c + kq
    r = V_W + 8 * ks + 4 * j + 2 * q
    lg_w[ks] = lds("ds_read_b64_tr_b16 v[%d:%d], v%d offset:%d" % (r, r + 1, V_TR2 if j else V_TR, kq * 8192 + q * 1024 + (c & 1) * 32768))
def tr_t(c): return [lambda kq=kq, j=j, q=q: trread(c, kq, j, q) for kq in range(4) for j in range(2) for q in range(2)]
def prune(c):
    wait(vm=vg["g%d" % c])
    if STAMP == 2 or (STAMP and c == 0): A.stamp(); stn[cur[0]].append("P%d" % c)
    for o in prune_ops(RAW[c]): e(o)
    mark("p%d" % c)

e("s_cmp_ge_u32 s2, 256")
e("s_cbranch_scc1 L_end")
if opts["map"] == 1:
    e("s_and_b32 s3, s2, 3"); e("s_lshl_b32 s3, s3, 3"); e("s_bfe_u32 s24, s2, 0x30002"); e("s_and_b32 s2, s2, 0xe0"); e("s_or_b32 s2, s2, s3"); e("s_or_b32 s2, s2, s24")
A.stamp()
e("s_load_dwordx4 s[4:7], s[0:1], 0")
e("s_load_dwordx2 s[%d:%d], s[0:1], 16" % (SB, SB + 1))
e("s_load_dwordx2 s[%d:%d], s[0:1], 24" % (SO, SO + 1))
if opts["ctouch"]:
    e("s_getpc_b64 s[%d:%d]" % (S_T1, S_T2))
    A.lab("L_pc")
    e("v_lshlrev_b32 v%d, 7, v0" % V_CT)
    e("v_min_u32 v%d, L_end-L_pc, v%d" % (V_CT, V_CT))
    e("v_mov_b32 v%d, s%d" % (V_CT + 1, S_T2))
    e("v_add_co_u32 v%d, vcc, s%d, v%d" % (V_CT, S_T1, V_CT))
    e("v_lshrrev_b32 v%d, 6, v0" % t0)
    e("v_and_b32 v%d, 63, v0" % V_L)
    e("v_addc_co_u32 v%d, vcc, 0, v%d, vcc" % (V_CT + 1, V_CT + 1))
    if opts["ctouch"] == 1: vmem("global_load_dword v%d, v[%d:%d], off" % (V_CT + 2, V_CT, V_CT + 1))
else:
    e("v_lshrrev_b32 v%d, 6, v0" % t0)
    e("v_and_b32 v%d, 63, v0" % V_L)
e("v_readfirstlane_b32 s%d, v%d" % (S_WAVE, t0))
e("s_lshr_b32 s%d, s2, 3" % S_T1)
e("s_and_b32 s%d, s%d, 3" % (S_T2, S_T1))
e("v_and_b32 v%d, 15, v%d" % (t0, V_L))
e("v_lshrrev_b32 v%d, 4, v%d" % (t1, V_L))
e("s_lshl_b32 s%d, s%d, 8" % (S_N4B, S_T2))
e("s_and_b32 s%d, s%d, 3" % (S_NQ, S_WAVE))
e("s_lshr_b32 s%d, s%d, 2" % (S_MH, S_WAVE))
e("s_lshl_b32 s%d, s%d, 2" % (S_T0, S_NQ))
e("s_add_u32 s%d, s%d, s%d" % (S_T0, S_T0, S_MH))
e("s_lshl_b32 s%d, s%d, 1" % (S_T0, S_T0))
e("v_and_b32 v%d, 2, v%d" % (t5, t1))
e("v_add_u32 v%d, v%d, v%d" % (t5, t5, t1))
e("v_add_u32 v%d, s%d, v%d" % (t5, S_T0, t5))
e("v_lshlrev_b32 v%d, 12, v%d" % (V_WOFF, t5))
e("v_lshl_add_u32 v%d, v%d, 4, v%d" % (V_WOFF, t0, V_WOFF))
e("v_add_u32 v%d, s%d, v%d" % (V_WOFF, S_N4B, V_WOFF))
e("s_lshr_b32 s%d, s%d, 2" % (S_T1, S_T1))
if opts["krot"]: e("s_and_b32 s%d, s%d, %d" % (S_WS, S_T1, opts["krot"]))
else: e("s_mov_b32 s%d, 0" % S_WS)
e("s_lshl_b32 s%d, s%d, 17" % (S_CH, S_WS))
for c in range(1, 4): e("s_xor_b32 s%d, s%d, 0x%x" % (S_CH + c, S_CH, c << 17))
e("s_mov_b32 s%d, 0x%x" % (SW + 2, 512 * 1024))
e("s_mov_b32 s%d, 0x00020000" % (SW + 3))
def pk(u): return sum(x << (4 * i) for i, x in enumerate(u))
e("s_mov_b32 s%d, 0x%x" % (S_LB, pk(UO[0])))
for q in range(1, 4):
    if UO[q] == UO[0]: continue
    e("s_cmp_eq_u32 s%d, %d" % (S_T2, q))
    e("s_cselect_b32 s%d, 0x%x, s%d" % (S_LB, pk(UO[q]), S_LB))
e("s_and_b32 s%d, s2, 7" % S_T0)
e("s_lshl_b32 s%d, s%d, 3" % (S_T1, S_T1))
e("s_add_u32 s%d, s%d, s%d" % (S_T1, S_T1, S_T0))
e("s_lshl_b32 s%d, s%d, 3" % (S_T1, S_T1))
e("s_waitcnt lgkmcnt(0)")
e("s_mov_b32 s%d, s6" % SW)
e("s_mov_b32 s%d, s7" % (SW + 1))
A.stamp()
for tok in opts["ci"].split("+"):
    if tok == "bar":
        if opts["ctouch"] == 2: vmem("global_load_dword v%d, v[%d:%d], off" % (V_CT + 2, V_CT, V_CT + 1))
        e("s_barrier")
    else: run(wload_t(tok, RAW[int(tok[1])], int(tok[1])))
e("s_mov_b32 s%d, s4" % SX)
e("s_mov_b32 s%d, s5" % (SX + 1))
for d, nb in ((SX, 16384 * 1024), (SO, 16384 * 1024), (SB, 1024)):
    e("s_mov_b32 s%d, 0x%x" % (d + 2, nb))
    e("s_mov_b32 s%d, 0x00020000" % (d + 3))
for t in range(8):
    e("s_bfe_u32 s%d, s%d, 0x%x" % (S_TB + t, S_LB, (3 << 16) | (4 * t)))
    e("s_add_u32 s%d, s%d, s%d" % (S_TB + t, S_TB + t, S_T1))
    e("s_lshl_b32 s%d, s%d, 15" % (S_TB + t, S_TB + t))
e("s_lshl_b32 s%d, s%d, 12" % (S_LB, S_NQ))
e("s_lshl_b32 s%d, s%d, 4" % (S_WS, S_WS))
e("s_lshl_b32 s%d, s%d, 2" % (S_T0, S_NQ))
e("s_or_b32 s%d, s%d, s%d" % (S_T0, S_T0, S_WS))
e("v_xor_b32 v%d, s%d, v%d" % (t2, S_T0, V_L))
e("v_lshlrev_b32 v%d, 4, v%d" % (t2, t2))
e("v_add_u32 v%d, s%d, v%d" % (V_XOFF, S_LB, t2))
for i in range(1, 4): e("v_xor_b32 v%d, %d, v%d" % (V_XOFF + i, 16 * i, V_XOFF))
e("v_lshlrev_b32 v%d, 10, v%d" % (t3, t5))
e("v_lshl_add_u32 v%d, v%d, 4, v%d" % (t3, t0, t3))
e("v_add_u32 v%d, 0x%x, v%d" % (V_WW, SLOT[3], t3))
for i in range(1, 4):
    e("v_xor_b32 v%d, %d, v%d" % (V_WW + i, 64 * i, V_WW))
e("v_mov_b32 v%d, 0x80008000" % V_C8)
e("v_xor_b32 v%d, v%d, v%d" % (t2, t1, t0))
e("v_lshlrev_b32 v%d, 4, v%d" % (t2, t2))
e("v_lshl_add_u32 v%d, v%d, 10, v%d" % (V_XA, t0, t2))
for q in range(1, 4): e("v_xor_b32 v%d, %d, v%d" % (V_XA + q, 64 * q, V_XA))
e("v_lshrrev_b32 v%d, 2, v%d" % (t2, t0))
e("v_lshl_add_u32 v%d, v%d, 3, v%d" % (t4, t1, t2))
e("v_lshlrev_b32 v%d, 8, v%d" % (V_TR, t4))
e("v_xor_b32 v%d, s%d, v%d" % (t4, S_NQ, t2))
e("v_lshl_add_u32 v%d, v%d, 6, v%d" % (V_TR, t4, V_TR))
e("v_and_b32 v%d, 3, v%d" % (t4, V_L))
e("v_lshl_add_u32 v%d, v%d, 4, v%d" % (V_TR, t4, V_TR))
e("v_and_b32 v%d, 1, v%d" % (t3, t1))
e("v_lshl_add_u32 v%d, v%d, 3, v%d" % (V_TR, t3, V_TR))
e("v_add_u32 v%d, 0x%x, v%d" % (V_TR, SLOT[3], V_TR))
e("v_xor_b32 v%d, 8, v%d" % (V_TR2, V_TR))
e("s_lshl_b32 s%d, s%d, 6" % (S_T0, S_NQ))
e("s_add_u32 s%d, s%d, s%d" % (S_T0, S_T0, S_N4B))
e("v_lshlrev_b32 v%d, 4, v%d" % (t2, t2))
e("v_add_u32 v%d, s%d, v%d" % (t2, S_T0, t2))
e("v_lshl_add_u32 v%d, v%d, 1, v%d" % (V_BOFF, t4, t2))
e("v_and_b32 v%d, 1, v%d" % (t3, V_L))
e("v_lshl_add_u32 v%d, v%d, 3, v%d" % (t2, t3, t2))
e("v_and_b32 v%d, 2, v%d" % (t4, V_L))
e("v_lshl_add_u32 v%d, v%d, 1, v%d" % (t2, t4, t2))
e("v_lshl_add_u32 v%d, v%d, 12, v%d" % (V_OOFF, t1, t2))
e("v_sub_u32 v%d, 0, v%d" % (t3, t3))
e("v_and_b32 v%d, 0x06060606, v%d" % (t3, t3))
e("v_xor_b32 v%d, 0x05040100, v%d" % (V_SEL, t3))
e("s_cmp_lg_u32 s%d, 0" % S_MH)
e("s_cbranch_scc1 L_B")
nst0 = A.NST
fork = (dict(C.__dict__), dict(vg), dict(vx))
st = {}
def bias_ld():
    vmem("buffer_load_ushort v%d, v%d, s[%d:%d], 0 offen" % (V_BIAS, V_BOFF, SB, SB + 3))
    st["vb"] = vmem("buffer_load_ushort v%d, v%d, s[%d:%d], 0 offen offset:8" % (V_BIAS + 4, V_BOFF, SB, SB + 3))
def bias_fix():
    wait(vm=st["vb"])
    for j in range(2):
        for r in (3, 2, 1, 0): e("v_lshlrev_b32 v%d, 16, v%d" % (V_BIAS + 4 * j + r, V_BIAS + 4 * j))

def stream(seq, mid, post, start_unit, sdel):
    N = len(seq)
    lg_x = {}; mf_pos = {}
    order = []
    for u, s, ks in seq:
        if (u, s) not in order: order.append((u, s))
    acc_of = {t: V_ACC + 8 * (i % 4) for i, t in enumerate(order)}
    sub_end = {(u, s): n for n, (u, s, ks) in enumerate(seq) if ks == 15}
    done_order = sorted(sub_end, key=lambda t: sub_end[t])
    out_of = {t: V_OUT + 4 * (i % 8) for i, t in enumerate(done_order)}
    cs = [-1]
    def xread(n):
        u, s, ks = seq[n]
        q = ks & 3
        r = V_XF + 4 * (n % NXF)
        lg_x[n] = lds("ds_read_b128 v[%d:%d], v%d offset:%d" % (r, r + 3, V_XA + q, s * 16384 + (ks >> 2) * 256))
        nxt = [m for m in range(n + 1, N) if (seq[m][2] & 3) == q]
        if nxt and seq[nxt[0]][0] != u:
            d = SLOT[USLOT[seq[nxt[0]][0]]] - SLOT[USLOT[u]]
            op = "v_add_u32 v%d, 0x%x, v%d" % (V_XA + q, d, V_XA + q) if d > 0 else "v_subrev_u32 v%d, 0x%x, v%d" % (V_XA + q, -d, V_XA + q)
            mid[cs[0]].append(lambda: e(op))
    def epi_ops(t):
        d = acc_of[t]; o = out_of[t]
        def cvt(r):
            gap = len(A.out) - mf_pos[t] - 1
            if gap < 8: e("s_nop %d" % (7 - gap)); mf_pos[t] -= 8
            e("v_cvt_pk_bf16_f32 v%d, v%d, v%d" % (o + r, d + r, d + 4 + r))
        return ([lambda r=r: cvt(r) for r in range(4)]
              + [lambda r=r: e("v_mov_b32_dpp v%d, v%d quad_perm:[1,0,3,2] row_mask:0xf bank_mask:0xf" % (V_T + r, o + r)) for r in range(4)]
              + [lambda r=r: e("v_perm_b32 v%d, v%d, v%d, v%d" % (o + r, V_T + r, o + r, V_SEL)) for r in range(4)])
    def store_ops(t):
        u, s = t; o = out_of[t]
        def sto(r):
            if r == 0 and s: e("s_add_u32 s%d, s%d, 0x4000" % (S_OS, S_TB + u))
            vmem("buffer_store_dword v%d, v%d, s[%d:%d], s%d offen offset:%d %s" % (o + r, V_OOFF, SO, SO + 3, S_OS if s else S_TB + u, r * 1024, STF if done_order.index(t) < len(done_order) - opts["nl"] else opts["stl"].replace("_", " ").replace("none", "")))
        fs = [lambda r=r: sto(r) for r in range(4)]
        for f in fs: f.vm = 1
        return fs
    tail = []
    free = 0; ready = {}
    for t in done_order:
        n = max(sub_end[t] + CPOS, free)
        ops = epi_ops(t) if not opts["noepi"] else []
        for k in range(6):
            (mid[n + k] if n + k < N else tail).extend(ops[2 * k:2 * k + 2])
        free = n + 6
        nxt_use = [m for m in range(sub_end[t] + 1, N) if acc_of[seq[m][:2]] == acc_of[t]]
        assert not nxt_use or nxt_use[0] > n + 2, t
        ready[t] = n + 6
    m = sdel
    for i, t in enumerate(done_order):
        m = max(m, ready[t])
        for f in (store_ops(t) if not opts["nost"] else []):
            backlog = i + 1 < len(done_order) and ready[done_order[i + 1]] <= m
            while m < N and mid[m] and not (backlog and opts["sstep"] == 1): m += 1
            (mid[m] if m < N else tail).append(f)
            m += 1
        if i + 8 < len(done_order): assert m <= ready[done_order[i + 8]] - 6, "output ring overflow"
    def mfma(n):
        u, s, ks = seq[n]
        need = max(lg_x[n], lg_w[ks])
        if need > C.lg_done:
            for m in range(n + 1, min(N, n + WSTEP)):
                if m in lg_x: need = max(need, lg_x[m])
            wait(lg=need)
        x = V_XF + 4 * (n % NXF)
        for j in range(2):
            d = acc_of[(u, s)] + 4 * j; w_ = V_W + 8 * ks + 4 * j
            cc = V_BIAS + 4 * j if ks == 0 else d
            if not opts["nomfma"]: e("v_mfma_f32_16x16x32_bf16 v[%d:%d], v[%d:%d], v[%d:%d], v[%d:%d]" % (d, d + 3, x, x + 3, w_, w_ + 3, cc, cc + 3))
            if j == 0: run(mid[n])
        mf_pos[(u, s)] = len(A.out) - 1
    st["late"]()
    if start_unit:
        for q in range(4): e("v_add_u32 v%d, 0x%x, v%d" % (V_XA + q, SLOT[USLOT[start_unit]], V_XA + q))
    for n in range(LAG): xread(n)
    run(mid[-1])
    for n in range(N):
        cs[0] = n
        if n + LAG < N: xread(n + LAG)
        mfma(n)
        run(post[n])
    run(tail)
def finish():
    if STAMP:
        A.stamp()
        e("s_waitcnt vmcnt(0)")
        A.stamp()
        e("s_barrier")
        A.stamp_dump(S_WAVE)

cur[0] = "A"
e("s_setprio %d" % (opts["pb"] + 1))
prune(0)
e("s_setprio %d" % opts["pa"])
wwrite(0)
bias_ld()
run(tok_t(opts["a0"]))
prune(1)
for c in (1, 2):
    run(tok_t(opts["s%d" % c]))
    if c == 2 and opts["biasat"] == 1: bias_fix()
    wait(lg=C.lg)
    barrier("ab"[c - 1])
    run(tr_t(c - 1)); mark("t%d" % (c - 1))
    wwrite(c)
    run(tok_t(opts["a%d" % c]))
    if c == 2:
        if opts["biasat"] == 0: bias_fix()
        if opts["b2bar"]:
            wait(lg=lg_w[7])
            barrier("b2")
        e("s_setprio 3")
    prune(c + 1)
wwrite(3)
run(tok_t(opts["a3"]))
wait(lg=C.lg, vm=vx.get(0))
e("s_setprio %d" % opts["pm"])
barrier("c")
seq = []
for u in range(2):
    for ks in range(12):
        for s in range(2): seq.append((u, s, ks))
for u in range(2):
    for s in range(2):
        for ks in range(12, 16): seq.append((u, s, ks))
for u in range(2, 8):
    for s in range(2):
        for ks in range(16): seq.append((u, s, ks))
mid = {n: [] for n in range(-1, len(seq))}; post = {n: [] for n in range(len(seq))}
for k, t in enumerate(tr_t(2)): mid[k // opts["t2r"]].append(t)
DP = opts["dpos"]
post[24 - LAG - 1].append(lambda: (wait(vm=vx.get(1)), barrier("X1")))
post[DP].append(lambda: barrier("d"))
for k, t in enumerate(tr_t(3)): mid[DP + 1 + k // opts["t3r"]].append(t)
post[64 - LAG - 1].append(lambda: (wait(vm=vx.get(2)), barrier("X2")))
if opts["dsched"] == 0:
    post[64].append(lambda: barrier("e"))
    for u in range(3, 8):
        post[32 * u - LAG - 1].append(lambda u=u: barrier("Y%d" % u))
else:
    post[96 - LAG - 1].append(lambda: barrier("Y3"))
    post[opts["rpos"]].append(lambda: barrier("R"))
    post[128 - LAG - 1].append(lambda: barrier("Y4"))
    post[opts["spos"]].append(lambda: barrier("S"))
st["late"] = lambda: None
stream(seq, mid, post, 0, opts["sdel"])
finish()
e("s_endpgm")

A.lab("L_B")
cur[0] = "B"; A.NST = nst0
C.__dict__.update(fork[0]); vg.clear(); vg.update(fork[1]); vx.clear(); vx.update(fork[2])
e("s_setprio %d" % opts["pb"])
run(tok_t(opts["bi"]))
prune(0)
wwrite(0)
run(tok_t(opts["b0"]))
wait(lg=C.lg)
barrier("a")
prune(1)
wwrite(1)
run(tok_t(opts["b1"]))
wait(lg=C.lg)
barrier("b")
prune(2)
if opts["b2bar"]:
    barrier("b2")
    wwrite(2)
run(tok_t(opts["b2"]))
wait(vm=vg["g3"])
ops = prune_ops(RAW[3])
for o in ops[:opts["bcut"]]: e(o)
wait(vm=vx.get(0))
barrier("c")
if not opts["b2bar"]:
    e("s_setprio %d" % opts["pw"])
    wwrite(2)
    if opts["bcut"] >= 96: wwrite(3)
    e("s_setprio %d" % opts["pbm"])
else:
    e("s_setprio %d" % opts["pbm"])
    for o in ops[opts["bcut"]:]: e(o)
    e("s_setprio %d" % opts["pw"])
    wwrite(3)
    e("s_setprio %d" % opts["pbm"])
run(tok_t(opts["b3"]))
wait(vm=vx.get(1))
barrier("X1")
if opts["bcut"] < 96 and not opts["b2bar"]:
    for o in ops[opts["bcut"]:]: e(o)
    e("s_setprio %d" % opts["pw"])
    wwrite(3)
    e("s_setprio %d" % opts["pbm"])
run(tok_t(opts["b4"]))
wait(lg=C.lg)
barrier("d")
def paced(ts):
    for t in ts:
        t()
        if opts["bpace"] and not opts["novmem"]: wait(vm=C.vm - opts["bpace"])
if opts["nodma"]:
    xdma_t = lambda u: []
run(xdma_t(3))
wait(vm=vx.get(2))
barrier("X2")
if opts["dsched"] == 0:
    barrier("e")
    paced(xdma_t(4))
    wait(vm=vx.get(3))
    barrier("Y3")
    paced(xdma_t(5))
    wait(vm=vx.get(4))
    barrier("Y4")
    paced(xdma_t(6))
    wait(vm=vx.get(5))
    barrier("Y5")
    paced(xdma_t(7))
    wait(vm=vx.get(6))
    barrier("Y6")
    wait(vm=vx.get(7))
    barrier("Y7")
else:
    run(xdma_t(4)); run(xdma_t(5))
    wait(vm=vx.get(3))
    barrier("Y3")
    run(xdma_t(6))
    barrier("R")
    run(xdma_t(7))
    wait(vm=vx.get(4))
    barrier("Y4")
    wait(vm=vx.get(7))
    barrier("S")
assert bars["A"][:len(bars["B"])] == bars["B"], (bars["A"], bars["B"])
if STAMP:
    for nm in bars["A"][len(bars["B"]):]: barrier(nm)
    finish()
A.lab("L_end")
e("s_endpgm")
sys.stderr.write("barriers: %s ; stamps %d\nA: %s\nB: %s\n" % (" ".join(bars["A"]), A.NST, "".join("%6s" % x for x in stn["A"]), "".join("%6s" % x for x in stn["B"])))
print(A.text(vgpr=256, sgpr=102 if STAMP else 48))
```

```python
import sys
from common import *

opts = dict(stamp=0, lag=7, nxf=8, wstep=2, st="nt", xf="", ctouch=1, novalu=0, nomfma=0, novmem=0, real=0,
            uo="02413567,03512467,12603457,13702456", cpos=3, krot=0, sdel=80, nost=0, noepi=0, nodma=0, nobar=0, stmid=1,
            ci="g0+bar+g1", bi="none", a0="g2+g3", b0="g2+g3", a1="U0h0", b1="U0h1", a2="none", b2="U1h1", pa=1, pb=2, dpos=36, bcut=64, dstep=2, bpace=3, s1="none", s2="none", b3="U2", b4="none", pm=2, pw=3, pbm=0, sstep=2, t2r=1, t3r=2, biasat=1, stl="nt", nl=0, a3="U1h0", b2bar=1, xfn=8, wf="", map=0, dsched=0, rpos=103, spos=135, u3e=0)
for a in sys.argv[1:]:
    k, v = a.split("=")
    assert k in opts, k
    opts[k] = int(v) if v.lstrip("-").isdigit() else v
STAMP = opts["stamp"]; LAG = opts["lag"]; NXF = opts["nxf"]; WSTEP = opts["wstep"]
STF = opts["st"].replace("_", " ") if opts["st"] != "none" else ""
XF = opts["xf"].replace("_", " ")
CPOS = opts["cpos"]
UO = [[int(c) for c in s] for s in opts["uo"].split(",")]
assert all(sorted(u) == list(range(8)) for u in UO) and len(UO) == 4

A = Asm(256, 512, 163840, stamp=bool(STAMP), waves=8)
e = A.e
A.REAL = bool(opts["real"])

cur = ["A"]
class Cnt:
    def reset(self): self.vm = 0; self.lg = 0; self.vm_done = 0; self.lg_done = 0
C = Cnt(); C.reset()
def vmem(s):
    if opts["novmem"] and "load" in s and (C.vm > 9 or "lds" in s): return C.vm
    e(s); C.vm += 1; return C.vm
def lds(s):
    e(s); C.lg += 1; return C.lg
def wait(vm=None, lg=None):
    parts = []
    if vm is not None and vm > C.vm_done:
        n = C.vm - vm
        assert n <= 63
        parts.append("vmcnt(%d)" % n); C.vm_done = vm
    if lg is not None and lg > C.lg_done:
        n = min(C.lg - lg, 15)
        parts.append("lgkmcnt(%d)" % n); C.lg_done = C.lg - n
    if parts: e("s_waitcnt " + " ".join(parts))
bars = {"A": [], "B": []}
def barrier(name):
    bars[cur[0]].append(name)
    if STAMP and (name in "abc" or (cur[0] == "B" and name in ("X1", "d"))): A.stamp(); stn[cur[0]].append(name)
    if not (opts["nobar"] and name not in ("a", "b", "b2", "c")): e("s_barrier    ; " + name)
    if STAMP == 1 and cur[0] == "B" and name not in "ab": A.stamp(); stn[cur[0]].append(name + "+")
stn = {"A": [], "B": []}
def mark(n):
    if STAMP == 2: A.stamp(); stn[cur[0]].append(n)
def run(ts):
    for t in ts: t()

SX, SW, SB, SO = 8, 12, 16, 20
S_WAVE, S_NQ, S_MH, S_N4B, S_LB, S_T0, S_T1, S_T2 = 24, 25, 26, 27, 28, 29, 30, 31
S_TB = 32
S_CH = 40
S_WS, S_XS, S_OS = 3, 4, 5
V_C8 = 0
V_WW = 1
V_TR = 5
V_SEL = 6; V_OOFF = 7
V_XA = 8
V_XOFF = 12
V_T = 16
V_BIAS = 24
V_XF = 32
V_OUT = 64
V_ACC = 96
V_W = 128
RAW = [224, 240, 64, 96]
V_L, V_WOFF, V_BOFF = 32, 33, 34
t0, t1, t2, t3, t4, t5 = 44, 45, 46, 47, 48, 49
V_CT = 50
V_TR2 = 95
SLOT = [0, 32768, 65536, 98304, 131072]
USLOT = [0, 1, 2, 3, 4, 0, 1, 2]
assert 32 + 4 * NXF <= 64 and LAG < NXF

def prune_ops(raw):
    s = []
    for d in range(4):
        a = [raw + 4 * i + d for i in range(4)]
        g = [V_T + i for i in range(4)]
        h1, l1, h2, l2 = [V_T + 4 + i for i in range(4)]
        for i in range(4): s.append("v_or_b32 v%d, v%d, v%d" % (g[i], V_C8, a[i]))
        s.append("v_pk_max_u16 v%d, v%d, v%d" % (h1, g[0], g[1]))
        s.append("v_pk_min_u16 v%d, v%d, v%d" % (l1, g[0], g[1]))
        s.append("v_pk_max_u16 v%d, v%d, v%d" % (h2, g[2], g[3]))
        s.append("v_pk_min_u16 v%d, v%d, v%d" % (l2, g[2], g[3]))
        s.append("v_pk_min_u16 v%d, v%d, v%d" % (h1, h1, h2))
        s.append("v_pk_max_u16 v%d, v%d, v%d" % (l1, l1, l2))
        s.append("v_pk_max_u16 v%d, v%d, v%d" % (h1, h1, l1))
        s.append("v_xor_b32 v%d, v%d, v%d" % (h1, V_C8, h1))
        for i in range(4): s.append("v_sub_u32 v%d, v%d, v%d" % (g[i], g[i], h1))
        for i in range(4): s.append("v_pk_ashrrev_i16 v%d, 15, v%d op_sel_hi:[0,1]" % (g[i], g[i]))
        for i in range(4): s.append("v_and_b32 v%d, v%d, v%d" % (a[i], g[i], a[i]))
    if opts["novalu"]: s = ["; " + o for o in s]
    return s
vg = {}
GR = {"A": [(0, 0), (1, 0), (2, 0), (2, 1)], "B": [(0, 1), (1, 1), (3, 0), (3, 1)]}
def own_par(): return 0 if cur[0] == "A" else 1
def wload1(key, g, i):
    r = RAW[g] + 4 * i
    c, par = GR[cur[0]][g]
    so = S_CH + c; vo = V_WOFF
    if par != own_par():
        vo = V_WOFF + 2
        if i == 0: e("v_xor_b32 v%d, 0x2000, v%d" % (vo, V_WOFF))
    vg[key] = vmem("buffer_load_dwordx4 v[%d:%d], v%d, s[%d:%d], s%d offen offset:%d %s" % (r, r + 3, vo, SW, SW + 3, so, i * 1024, opts["wf"].replace("_", " ")))
def wload_t(key, raw, g): return [lambda i=i: wload1(key, g, i) for i in range(4)]
ww_base = {"A": 0, "B": 0}
def wwrite(g):
    c, par = GR[cur[0]][g]
    want = (c & 1) * 32768 + (par - own_par()) * 2048
    d = want - ww_base[cur[0]]
    if par == 1 and d or d < 0:
        for i in range(4): e("v_%s_u32 v%d, 0x%x, v%d" % ("add" if d > 0 else "subrev", V_WW + i, abs(d), V_WW + i))
        ww_base[cur[0]] = want; d = 0
    for i in range(4):
        r = RAW[g] + 4 * i
        if par == 0:
            w = lds("ds_write_b128 v%d, v[%d:%d] offset:%d" % (V_WW + i, r, r + 3, i * 256 + d))
        else:
            w = lds("ds_write2_b64 v%d, v[%d:%d], v[%d:%d] offset0:%d offset1:%d" % (V_WW + i, r, r + 1, r + 2, r + 3, i * 32 + 1, i * 32))
    mark("w%d" % g)
    return w
vx = {}
def xdma1(u, a, i):
    if i == 0:
        e("s_add_u32 m0, s%d, 0x%x" % (S_LB, SLOT[USLOT[u]] + a * 16384))
        if a: e("s_add_u32 s%d, s%d, 0x4000" % (S_XS, S_TB + u))
        else: e("s_nop 0")
    s = S_XS if a else S_TB + u
    vx[u] = vmem("buffer_load_dwordx4 v%d, s[%d:%d], s%d offen offset:%d %s lds" % (V_XOFF + i, SX, SX + 3, s, i * 1024, XF if u < opts["xfn"] else ""))
def xdma_t(u): return [lambda a=a, i=i: xdma1(u, a, i) for a in range(2) for i in range(4)]
def tok_t(tok):
    out = []
    for t in tok.split("+"):
        if t == "" or t == "none": continue
        if t[0] == "w": out.append(lambda t=t: wait(vm=vg[t[1:]] if t[1] != "U" else vx[int(t[2])]))
        elif t[0] == "g": c = int(t[1]); out += wload_t(t, RAW[c], c)
        elif len(t) == 2: out += xdma_t(int(t[1]))
        else: out += xdma_t(int(t[1]))[4 * int(t[3]):4 * int(t[3]) + 4]
    return out
lg_w = {}
def trread(c, kq, j, q):
    ks = 4 * c + kq
    r = V_W + 8 * ks + 4 * j + 2 * q
    lg_w[ks] = lds("ds_read_b64_tr_b16 v[%d:%d], v%d offset:%d" % (r, r + 1, V_TR2 if j else V_TR, kq * 8192 + q * 1024 + (c & 1) * 32768))
def tr_t(c): return [lambda kq=kq, j=j, q=q: trread(c, kq, j, q) for kq in range(4) for j in range(2) for q in range(2)]
def prune(c):
    wait(vm=vg["g%d" % c])
    if STAMP == 2 or (STAMP and c == 0): A.stamp(); stn[cur[0]].append("P%d" % c)
    for o in prune_ops(RAW[c]): e(o)
    mark("p%d" % c)

e("s_cmp_ge_u32 s2, 256")
e("s_cbranch_scc1 L_end")
if opts["map"] == 1:
    e("s_and_b32 s3, s2, 3"); e("s_lshl_b32 s3, s3, 3"); e("s_bfe_u32 s24, s2, 0x30002"); e("s_and_b32 s2, s2, 0xe0"); e("s_or_b32 s2, s2, s3"); e("s_or_b32 s2, s2, s24")
A.stamp()
e("s_load_dwordx4 s[4:7], s[0:1], 0")
e("s_load_dwordx2 s[%d:%d], s[0:1], 16" % (SB, SB + 1))
e("s_load_dwordx2 s[%d:%d], s[0:1], 24" % (SO, SO + 1))
if opts["ctouch"]:
    e("s_getpc_b64 s[%d:%d]" % (S_T1, S_T2))
    A.lab("L_pc")
    e("v_lshlrev_b32 v%d, 7, v0" % V_CT)
    e("v_min_u32 v%d, L_end-L_pc, v%d" % (V_CT, V_CT))
    e("v_mov_b32 v%d, s%d" % (V_CT + 1, S_T2))
    e("v_add_co_u32 v%d, vcc, s%d, v%d" % (V_CT, S_T1, V_CT))
    e("v_lshrrev_b32 v%d, 6, v0" % t0)
    e("v_and_b32 v%d, 63, v0" % V_L)
    e("v_addc_co_u32 v%d, vcc, 0, v%d, vcc" % (V_CT + 1, V_CT + 1))
    if opts["ctouch"] == 1: vmem("global_load_dword v%d, v[%d:%d], off" % (V_CT + 2, V_CT, V_CT + 1))
else:
    e("v_lshrrev_b32 v%d, 6, v0" % t0)
    e("v_and_b32 v%d, 63, v0" % V_L)
e("v_readfirstlane_b32 s%d, v%d" % (S_WAVE, t0))
e("s_lshr_b32 s%d, s2, 3" % S_T1)
e("s_and_b32 s%d, s%d, 3" % (S_T2, S_T1))
e("v_and_b32 v%d, 15, v%d" % (t0, V_L))
e("v_lshrrev_b32 v%d, 4, v%d" % (t1, V_L))
e("s_lshl_b32 s%d, s%d, 8" % (S_N4B, S_T2))
e("s_and_b32 s%d, s%d, 3" % (S_NQ, S_WAVE))
e("s_lshr_b32 s%d, s%d, 2" % (S_MH, S_WAVE))
e("s_lshl_b32 s%d, s%d, 2" % (S_T0, S_NQ))
e("s_add_u32 s%d, s%d, s%d" % (S_T0, S_T0, S_MH))
e("s_lshl_b32 s%d, s%d, 1" % (S_T0, S_T0))
e("v_and_b32 v%d, 2, v%d" % (t5, t1))
e("v_add_u32 v%d, v%d, v%d" % (t5, t5, t1))
e("v_add_u32 v%d, s%d, v%d" % (t5, S_T0, t5))
e("v_lshlrev_b32 v%d, 12, v%d" % (V_WOFF, t5))
e("v_lshl_add_u32 v%d, v%d, 4, v%d" % (V_WOFF, t0, V_WOFF))
e("v_add_u32 v%d, s%d, v%d" % (V_WOFF, S_N4B, V_WOFF))
e("s_lshr_b32 s%d, s%d, 2" % (S_T1, S_T1))
if opts["krot"]: e("s_and_b32 s%d, s%d, %d" % (S_WS, S_T1, opts["krot"]))
else: e("s_mov_b32 s%d, 0" % S_WS)
e("s_lshl_b32 s%d, s%d, 17" % (S_CH, S_WS))
for c in range(1, 4): e("s_xor_b32 s%d, s%d, 0x%x" % (S_CH + c, S_CH, c << 17))
e("s_mov_b32 s%d, 0x%x" % (SW + 2, 512 * 1024))
e("s_mov_b32 s%d, 0x00020000" % (SW + 3))
def pk(u): return sum(x << (4 * i) for i, x in enumerate(u))
e("s_mov_b32 s%d, 0x%x" % (S_LB, pk(UO[0])))
for q in range(1, 4):
    if UO[q] == UO[0]: continue
    e("s_cmp_eq_u32 s%d, %d" % (S_T2, q))
    e("s_cselect_b32 s%d, 0x%x, s%d" % (S_LB, pk(UO[q]), S_LB))
e("s_and_b32 s%d, s2, 7" % S_T0)
e("s_lshl_b32 s%d, s%d, 3" % (S_T1, S_T1))
e("s_add_u32 s%d, s%d, s%d" % (S_T1, S_T1, S_T0))
e("s_lshl_b32 s%d, s%d, 3" % (S_T1, S_T1))
e("s_waitcnt lgkmcnt(0)")
e("s_mov_b32 s%d, s6" % SW)
e("s_mov_b32 s%d, s7" % (SW + 1))
A.stamp()
for tok in opts["ci"].split("+"):
    if tok == "bar":
        if opts["ctouch"] == 2: vmem("global_load_dword v%d, v[%d:%d], off" % (V_CT + 2, V_CT, V_CT + 1))
        e("s_barrier")
    else: run(wload_t(tok, RAW[int(tok[1])], int(tok[1])))
e("s_mov_b32 s%d, s4" % SX)
e("s_mov_b32 s%d, s5" % (SX + 1))
for d, nb in ((SX, 16384 * 1024), (SO, 16384 * 1024), (SB, 1024)):
    e("s_mov_b32 s%d, 0x%x" % (d + 2, nb))
    e("s_mov_b32 s%d, 0x00020000" % (d + 3))
for t in range(8):
    e("s_bfe_u32 s%d, s%d, 0x%x" % (S_TB + t, S_LB, (3 << 16) | (4 * t)))
    e("s_add_u32 s%d, s%d, s%d" % (S_TB + t, S_TB + t, S_T1))
    e("s_lshl_b32 s%d, s%d, 15" % (S_TB + t, S_TB + t))
e("s_lshl_b32 s%d, s%d, 12" % (S_LB, S_NQ))
e("s_lshl_b32 s%d, s%d, 4" % (S_WS, S_WS))
e("s_lshl_b32 s%d, s%d, 2" % (S_T0, S_NQ))
e("s_or_b32 s%d, s%d, s%d" % (S_T0, S_T0, S_WS))
e("v_xor_b32 v%d, s%d, v%d" % (t2, S_T0, V_L))
e("v_lshlrev_b32 v%d, 4, v%d" % (t2, t2))
e("v_add_u32 v%d, s%d, v%d" % (V_XOFF, S_LB, t2))
for i in range(1, 4): e("v_xor_b32 v%d, %d, v%d" % (V_XOFF + i, 16 * i, V_XOFF))
e("v_lshlrev_b32 v%d, 10, v%d" % (t3, t5))
e("v_lshl_add_u32 v%d, v%d, 4, v%d" % (t3, t0, t3))
e("v_add_u32 v%d, 0x%x, v%d" % (V_WW, SLOT[3], t3))
for i in range(1, 4):
    e("v_xor_b32 v%d, %d, v%d" % (V_WW + i, 64 * i, V_WW))
e("v_mov_b32 v%d, 0x80008000" % V_C8)
e("v_xor_b32 v%d, v%d, v%d" % (t2, t1, t0))
e("v_lshlrev_b32 v%d, 4, v%d" % (t2, t2))
e("v_lshl_add_u32 v%d, v%d, 10, v%d" % (V_XA, t0, t2))
for q in range(1, 4): e("v_xor_b32 v%d, %d, v%d" % (V_XA + q, 64 * q, V_XA))
e("v_lshrrev_b32 v%d, 2, v%d" % (t2, t0))
e("v_lshl_add_u32 v%d, v%d, 3, v%d" % (t4, t1, t2))
e("v_lshlrev_b32 v%d, 8, v%d" % (V_TR, t4))
e("v_xor_b32 v%d, s%d, v%d" % (t4, S_NQ, t2))
e("v_lshl_add_u32 v%d, v%d, 6, v%d" % (V_TR, t4, V_TR))
e("v_and_b32 v%d, 3, v%d" % (t4, V_L))
e("v_lshl_add_u32 v%d, v%d, 4, v%d" % (V_TR, t4, V_TR))
e("v_and_b32 v%d, 1, v%d" % (t3, t1))
e("v_lshl_add_u32 v%d, v%d, 3, v%d" % (V_TR, t3, V_TR))
e("v_add_u32 v%d, 0x%x, v%d" % (V_TR, SLOT[3], V_TR))
e("v_xor_b32 v%d, 8, v%d" % (V_TR2, V_TR))
e("s_lshl_b32 s%d, s%d, 6" % (S_T0, S_NQ))
e("s_add_u32 s%d, s%d, s%d" % (S_T0, S_T0, S_N4B))
e("v_lshlrev_b32 v%d, 4, v%d" % (t2, t2))
e("v_add_u32 v%d, s%d, v%d" % (t2, S_T0, t2))
e("v_lshl_add_u32 v%d, v%d, 1, v%d" % (V_BOFF, t4, t2))
e("v_and_b32 v%d, 1, v%d" % (t3, V_L))
e("v_lshl_add_u32 v%d, v%d, 3, v%d" % (t2, t3, t2))
e("v_and_b32 v%d, 2, v%d" % (t4, V_L))
e("v_lshl_add_u32 v%d, v%d, 1, v%d" % (t2, t4, t2))
e("v_lshl_add_u32 v%d, v%d, 12, v%d" % (V_OOFF, t1, t2))
e("v_sub_u32 v%d, 0, v%d" % (t3, t3))
e("v_and_b32 v%d, 0x06060606, v%d" % (t3, t3))
e("v_xor_b32 v%d, 0x05040100, v%d" % (V_SEL, t3))
e("s_cmp_lg_u32 s%d, 0" % S_MH)
e("s_cbranch_scc1 L_B")
nst0 = A.NST
fork = (dict(C.__dict__), dict(vg), dict(vx))
st = {}
def bias_ld():
    vmem("buffer_load_ushort v%d, v%d, s[%d:%d], 0 offen" % (V_BIAS, V_BOFF, SB, SB + 3))
    st["vb"] = vmem("buffer_load_ushort v%d, v%d, s[%d:%d], 0 offen offset:8" % (V_BIAS + 4, V_BOFF, SB, SB + 3))
def bias_fix():
    wait(vm=st["vb"])
    for j in range(2):
        for r in (3, 2, 1, 0): e("v_lshlrev_b32 v%d, 16, v%d" % (V_BIAS + 4 * j + r, V_BIAS + 4 * j))

def stream(seq, mid, post, start_unit, sdel):
    N = len(seq)
    lg_x = {}; mf_pos = {}
    order = []
    for u, s, ks in seq:
        if (u, s) not in order: order.append((u, s))
    acc_of = {t: V_ACC + 8 * (i % 4) for i, t in enumerate(order)}
    sub_end = {(u, s): n for n, (u, s, ks) in enumerate(seq) if ks == 15}
    done_order = sorted(sub_end, key=lambda t: sub_end[t])
    out_of = {t: V_OUT + 4 * (i % 8) for i, t in enumerate(done_order)}
    cs = [-1]
    def xread(n):
        u, s, ks = seq[n]
        q = ks & 3
        r = V_XF + 4 * (n % NXF)
        lg_x[n] = lds("ds_read_b128 v[%d:%d], v%d offset:%d" % (r, r + 3, V_XA + q, s * 16384 + (ks >> 2) * 256))
        nxt = [m for m in range(n + 1, N) if (seq[m][2] & 3) == q]
        if nxt and seq[nxt[0]][0] != u:
            d = SLOT[USLOT[seq[nxt[0]][0]]] - SLOT[USLOT[u]]
            op = "v_add_u32 v%d, 0x%x, v%d" % (V_XA + q, d, V_XA + q) if d > 0 else "v_subrev_u32 v%d, 0x%x, v%d" % (V_XA + q, -d, V_XA + q)
            mid[cs[0]].append(lambda: e(op))
    def epi_ops(t):
        d = acc_of[t]; o = out_of[t]
        def cvt(r):
            gap = len(A.out) - mf_pos[t] - 1
            if gap < 8: e("s_nop %d" % (7 - gap)); mf_pos[t] -= 8
            e("v_cvt_pk_bf16_f32 v%d, v%d, v%d" % (o + r, d + r, d + 4 + r))
        return ([lambda r=r: cvt(r) for r in range(4)]
              + [lambda r=r: e("v_mov_b32_dpp v%d, v%d quad_perm:[1,0,3,2] row_mask:0xf bank_mask:0xf" % (V_T + r, o + r)) for r in range(4)]
              + [lambda r=r: e("v_perm_b32 v%d, v%d, v%d, v%d" % (o + r, V_T + r, o + r, V_SEL)) for r in range(4)])
    def store_ops(t):
        u, s = t; o = out_of[t]
        def sto(r):
            if r == 0 and s: e("s_add_u32 s%d, s%d, 0x4000" % (S_OS, S_TB + u))
            vmem("buffer_store_dword v%d, v%d, s[%d:%d], s%d offen offset:%d %s" % (o + r, V_OOFF, SO, SO + 3, S_OS if s else S_TB + u, r * 1024, STF if done_order.index(t) < len(done_order) - opts["nl"] else opts["stl"].replace("_", " ").replace("none", "")))
        fs = [lambda r=r: sto(r) for r in range(4)]
        for f in fs: f.vm = 1
        return fs
    tail = []
    free = 0; ready = {}
    for t in done_order:
        n = max(sub_end[t] + CPOS, free)
        ops = epi_ops(t) if not opts["noepi"] else []
        for k in range(6):
            (mid[n + k] if n + k < N else tail).extend(ops[2 * k:2 * k + 2])
        free = n + 6
        nxt_use = [m for m in range(sub_end[t] + 1, N) if acc_of[seq[m][:2]] == acc_of[t]]
        assert not nxt_use or nxt_use[0] > n + 2, t
        ready[t] = n + 6
    m = sdel
    for i, t in enumerate(done_order):
        m = max(m, ready[t])
        for f in (store_ops(t) if not opts["nost"] else []):
            backlog = i + 1 < len(done_order) and ready[done_order[i + 1]] <= m
            while m < N and mid[m] and not (backlog and opts["sstep"] == 1): m += 1
            (mid[m] if m < N else tail).append(f)
            m += 1
        if i + 8 < len(done_order): assert m <= ready[done_order[i + 8]] - 6, "output ring overflow"
    def mfma(n):
        u, s, ks = seq[n]
        need = max(lg_x[n], lg_w[ks])
        if need > C.lg_done:
            for m in range(n + 1, min(N, n + WSTEP)):
                if m in lg_x: need = max(need, lg_x[m])
            wait(lg=need)
        x = V_XF + 4 * (n % NXF)
        for j in range(2):
            d = acc_of[(u, s)] + 4 * j; w_ = V_W + 8 * ks + 4 * j
            cc = V_BIAS + 4 * j if ks == 0 else d
            if not opts["nomfma"]: e("v_mfma_f32_16x16x32_bf16 v[%d:%d], v[%d:%d], v[%d:%d], v[%d:%d]" % (d, d + 3, x, x + 3, w_, w_ + 3, cc, cc + 3))
            if j == 0: run(mid[n])
        mf_pos[(u, s)] = len(A.out) - 1
    st["late"]()
    if start_unit:
        for q in range(4): e("v_add_u32 v%d, 0x%x, v%d" % (V_XA + q, SLOT[USLOT[start_unit]], V_XA + q))
    for n in range(LAG): xread(n)
    run(mid[-1])
    for n in range(N):
        cs[0] = n
        if n + LAG < N: xread(n + LAG)
        mfma(n)
        run(post[n])
    run(tail)
def finish():
    if STAMP:
        A.stamp()
        e("s_waitcnt vmcnt(0)")
        A.stamp()
        e("s_barrier")
        A.stamp_dump(S_WAVE)

cur[0] = "A"
e("s_setprio %d" % (opts["pb"] + 1))
prune(0)
e("s_setprio %d" % opts["pa"])
wwrite(0)
bias_ld()
run(tok_t(opts["a0"]))
prune(1)
for c in (1, 2):
    run(tok_t(opts["s%d" % c]))
    if c == 2 and opts["biasat"] == 1: bias_fix()
    wait(lg=C.lg)
    barrier("ab"[c - 1])
    run(tr_t(c - 1)); mark("t%d" % (c - 1))
    wwrite(c)
    run(tok_t(opts["a%d" % c]))
    if c == 2:
        if opts["biasat"] == 0: bias_fix()
        if opts["b2bar"]:
            wait(lg=lg_w[7])
            barrier("b2")
        e("s_setprio 3")
    prune(c + 1)
wwrite(3)
run(tok_t(opts["a3"]))
wait(lg=C.lg, vm=vx.get(0))
e("s_setprio %d" % opts["pm"])
barrier("c")
seq = []
for u in range(2):
    for ks in range(12):
        for s in range(2): seq.append((u, s, ks))
for u in range(2):
    for s in range(2):
        for ks in range(12, 16): seq.append((u, s, ks))
for u in range(2, 8):
    for s in range(2):
        for ks in range(16): seq.append((u, s, ks))
mid = {n: [] for n in range(-1, len(seq))}; post = {n: [] for n in range(len(seq))}
for k, t in enumerate(tr_t(2)): mid[k // opts["t2r"]].append(t)
DP = opts["dpos"]
post[24 - LAG - 1].append(lambda: (wait(vm=vx.get(1), lg=lg_w[11] if opts["u3e"] else None), barrier("X1")))
post[DP].append(lambda: barrier("d"))
for k, t in enumerate(tr_t(3)): mid[DP + 1 + k // opts["t3r"]].append(t)
post[64 - LAG - 1].append(lambda: (wait(vm=vx.get(2)), barrier("X2")))
if opts["dsched"] == 0:
    post[64].append(lambda: barrier("e"))
    for u in range(3, 8):
        post[32 * u - LAG - 1].append(lambda u=u: barrier("Y%d" % u))
else:
    post[96 - LAG - 1].append(lambda: barrier("Y3"))
    post[opts["rpos"]].append(lambda: barrier("R"))
    post[128 - LAG - 1].append(lambda: barrier("Y4"))
    post[opts["spos"]].append(lambda: barrier("S"))
st["late"] = lambda: None
stream(seq, mid, post, 0, opts["sdel"])
finish()
e("s_endpgm")

A.lab("L_B")
cur[0] = "B"; A.NST = nst0
C.__dict__.update(fork[0]); vg.clear(); vg.update(fork[1]); vx.clear(); vx.update(fork[2])
e("s_setprio %d" % opts["pb"])
run(tok_t(opts["bi"]))
prune(0)
wwrite(0)
run(tok_t(opts["b0"]))
wait(lg=C.lg)
barrier("a")
prune(1)
wwrite(1)
run(tok_t(opts["b1"]))
wait(lg=C.lg)
barrier("b")
prune(2)
if opts["b2bar"]:
    barrier("b2")
    wwrite(2)
run(tok_t(opts["b2"]))
wait(vm=vg["g3"])
ops = prune_ops(RAW[3])
for o in ops[:opts["bcut"]]: e(o)
wait(vm=vx.get(0))
barrier("c")
if not opts["b2bar"]:
    e("s_setprio %d" % opts["pw"])
    wwrite(2)
    if opts["bcut"] >= 96: wwrite(3)
    e("s_setprio %d" % opts["pbm"])
else:
    e("s_setprio %d" % opts["pbm"])
    for o in ops[opts["bcut"]:]: e(o)
    e("s_setprio %d" % opts["pw"])
    wwrite(3)
    e("s_setprio %d" % opts["pbm"])
run(tok_t(opts["b3"]))
wait(vm=vx.get(1))
barrier("X1")
if opts["bcut"] < 96 and not opts["b2bar"]:
    for o in ops[opts["bcut"]:]: e(o)
    e("s_setprio %d" % opts["pw"])
    wwrite(3)
    e("s_setprio %d" % opts["pbm"])
run(tok_t(opts["b4"]))
if opts["u3e"]: run(xdma_t(3)[:4 * opts["u3e"]])
wait(lg=C.lg)
barrier("d")
def paced(ts):
    for t in ts:
        t()
        if opts["bpace"] and not opts["novmem"]: wait(vm=C.vm - opts["bpace"])
if opts["nodma"]:
    xdma_t = lambda u: []
run(xdma_t(3)[4 * opts["u3e"]:])
wait(vm=vx.get(2))
barrier("X2")
if opts["dsched"] == 0:
    barrier("e")
    paced(xdma_t(4))
    wait(vm=vx.get(3))
    barrier("Y3")
    paced(xdma_t(5))
    wait(vm=vx.get(4))
    barrier("Y4")
    paced(xdma_t(6))
    wait(vm=vx.get(5))
    barrier("Y5")
    paced(xdma_t(7))
    wait(vm=vx.get(6))
    barrier("Y6")
    wait(vm=vx.get(7))
    barrier("Y7")
else:
    run(xdma_t(4)); run(xdma_t(5))
    wait(vm=vx.get(3))
    barrier("Y3")
    run(xdma_t(6))
    barrier("R")
    run(xdma_t(7))
    wait(vm=vx.get(4))
    barrier("Y4")
    wait(vm=vx.get(7))
    barrier("S")
assert bars["A"][:len(bars["B"])] == bars["B"], (bars["A"], bars["B"])
if STAMP:
    for nm in bars["A"][len(bars["B"]):]: barrier(nm)
    finish()
A.lab("L_end")
e("s_endpgm")
sys.stderr.write("barriers: %s ; stamps %d\nA: %s\nB: %s\n" % (" ".join(bars["A"]), A.NST, "".join("%6s" % x for x in stn["A"]), "".join("%6s" % x for x in stn["B"])))
print(A.text(vgpr=256, sgpr=102 if STAMP else 48))
```

```python
import sys
from common import *

opts = dict(stamp=0, lag=7, nxf=8, wstep=2, st="nt", xf="", ctouch=1, novalu=0, nomfma=0, novmem=0, real=0,
            uo="01234567,45670123,01234567,45670123", cpos=3, krot=3, sdel=92, nost=0, noepi=0, nodma=0, nobar=0, stmid=1,
            ci="g0+bar+g1", bi="none", a0="g2+g3", b0="g2+g3", a1="U0h0", b1="U0h1", a2="none", b2="U1h1", pa=1, pb=2, dpos=36, bcut=64, dstep=2, bpace=3, s1="none", s2="none", b3="U2", b4="none", pm=2, pw=3, pbm=0, sstep=2, t2r=2, t3r=2, biasat=1, stl="nt", nl=0, a3="U1h0", b2bar=1, xfn=8, wf="", map=0, dsched=0, rpos=103, spos=135, u3e=2, nu1=2, ai="none")
for a in sys.argv[1:]:
    k, v = a.split("=")
    assert k in opts, k
    opts[k] = int(v) if v.lstrip("-").isdigit() else v
STAMP = opts["stamp"]; LAG = opts["lag"]; NXF = opts["nxf"]; WSTEP = opts["wstep"]
STF = opts["st"].replace("_", " ") if opts["st"] != "none" else ""
XF = opts["xf"].replace("_", " ")
CPOS = opts["cpos"]
UO = [[int(c) for c in s] for s in opts["uo"].split(",")]
assert all(sorted(u) == list(range(8)) for u in UO) and len(UO) == 4

A = Asm(256, 512, 163840, stamp=bool(STAMP), waves=8)
e = A.e
A.REAL = bool(opts["real"])

cur = ["A"]
class Cnt:
    def reset(self): self.vm = 0; self.lg = 0; self.vm_done = 0; self.lg_done = 0
C = Cnt(); C.reset()
def vmem(s):
    if opts["novmem"] and "load" in s and (C.vm > 9 or "lds" in s): return C.vm
    e(s); C.vm += 1; return C.vm
def lds(s):
    e(s); C.lg += 1; return C.lg
def wait(vm=None, lg=None):
    parts = []
    if vm is not None and vm > C.vm_done:
        n = C.vm - vm
        assert n <= 63
        parts.append("vmcnt(%d)" % n); C.vm_done = vm
    if lg is not None and lg > C.lg_done:
        n = min(C.lg - lg, 15)
        parts.append("lgkmcnt(%d)" % n); C.lg_done = C.lg - n
    if parts: e("s_waitcnt " + " ".join(parts))
bars = {"A": [], "B": []}
def barrier(name):
    bars[cur[0]].append(name)
    if STAMP and (name in "abc" or (cur[0] == "B" and name in ("X1", "d"))): A.stamp(); stn[cur[0]].append(name)
    if not (opts["nobar"] and name not in ("a", "b", "b2", "c")): e("s_barrier    ; " + name)
    if STAMP == 1 and cur[0] == "B" and name not in "ab": A.stamp(); stn[cur[0]].append(name + "+")
stn = {"A": [], "B": []}
def mark(n):
    if STAMP == 2: A.stamp(); stn[cur[0]].append(n)
def run(ts):
    for t in ts: t()

SX, SW, SB, SO = 8, 12, 16, 20
S_WAVE, S_NQ, S_MH, S_N4B, S_LB, S_T0, S_T1, S_T2 = 24, 25, 26, 27, 28, 29, 30, 31
S_TB = 32
S_CH = 40
S_WS, S_XS, S_OS = 3, 4, 5
V_C8 = 0
V_WW = 1
V_TR = 5
V_SEL = 6; V_OOFF = 7
V_XA = 8
V_XOFF = 12
V_T = 16
V_BIAS = 24
V_XF = 32
V_OUT = 64
V_ACC = 96
V_W = 128
RAW = [224, 240, 64, 96]
V_L, V_WOFF, V_BOFF = 32, 33, 34
t0, t1, t2, t3, t4, t5 = 44, 45, 46, 47, 48, 49
V_CT = 50
V_TR2 = 95
SLOT = [0, 32768, 65536, 98304, 131072]
USLOT = [0, 1, 2, 3, 4, 0, 1, 2]
assert 32 + 4 * NXF <= 64 and LAG < NXF

def prune_ops(raw):
    s = []
    for d in range(4):
        a = [raw + 4 * i + d for i in range(4)]
        g = [V_T + i for i in range(4)]
        h1, l1, h2, l2 = [V_T + 4 + i for i in range(4)]
        for i in range(4): s.append("v_or_b32 v%d, v%d, v%d" % (g[i], V_C8, a[i]))
        s.append("v_pk_max_u16 v%d, v%d, v%d" % (h1, g[0], g[1]))
        s.append("v_pk_min_u16 v%d, v%d, v%d" % (l1, g[0], g[1]))
        s.append("v_pk_max_u16 v%d, v%d, v%d" % (h2, g[2], g[3]))
        s.append("v_pk_min_u16 v%d, v%d, v%d" % (l2, g[2], g[3]))
        s.append("v_pk_min_u16 v%d, v%d, v%d" % (h1, h1, h2))
        s.append("v_pk_max_u16 v%d, v%d, v%d" % (l1, l1, l2))
        s.append("v_pk_max_u16 v%d, v%d, v%d" % (h1, h1, l1))
        s.append("v_xor_b32 v%d, v%d, v%d" % (h1, V_C8, h1))
        for i in range(4): s.append("v_sub_u32 v%d, v%d, v%d" % (g[i], g[i], h1))
        for i in range(4): s.append("v_pk_ashrrev_i16 v%d, 15, v%d op_sel_hi:[0,1]" % (g[i], g[i]))
        for i in range(4): s.append("v_and_b32 v%d, v%d, v%d" % (a[i], g[i], a[i]))
    if opts["novalu"]: s = ["; " + o for o in s]
    return s
vg = {}
GR = {"A": [(0, 0), (1, 0), (2, 0), (2, 1)], "B": [(0, 1), (1, 1), (3, 0), (3, 1)]}
def own_par(): return 0 if cur[0] == "A" else 1
def wload1(key, g, i):
    r = RAW[g] + 4 * i
    c, par = GR[cur[0]][g]
    so = S_CH + c; vo = V_WOFF
    if par != own_par():
        vo = V_WOFF + 2
        if i == 0: e("v_xor_b32 v%d, 0x2000, v%d" % (vo, V_WOFF))
    vg[key] = vmem("buffer_load_dwordx4 v[%d:%d], v%d, s[%d:%d], s%d offen offset:%d %s" % (r, r + 3, vo, SW, SW + 3, so, i * 1024, opts["wf"].replace("_", " ")))
def wload_t(key, raw, g): return [lambda i=i: wload1(key, g, i) for i in range(4)]
ww_base = {"A": 0, "B": 0}
def wwrite(g):
    c, par = GR[cur[0]][g]
    want = (c & 1) * 32768 + (par - own_par()) * 2048
    d = want - ww_base[cur[0]]
    if par == 1 and d or d < 0:
        for i in range(4): e("v_%s_u32 v%d, 0x%x, v%d" % ("add" if d > 0 else "subrev", V_WW + i, abs(d), V_WW + i))
        ww_base[cur[0]] = want; d = 0
    for i in range(4):
        r = RAW[g] + 4 * i
        if par == 0:
            w = lds("ds_write_b128 v%d, v[%d:%d] offset:%d" % (V_WW + i, r, r + 3, i * 256 + d))
        else:
            w = lds("ds_write2_b64 v%d, v[%d:%d], v[%d:%d] offset0:%d offset1:%d" % (V_WW + i, r, r + 1, r + 2, r + 3, i * 32 + 1, i * 32))
    mark("w%d" % g)
    return w
vx = {}
def xdma1(u, a, i):
    if i == 0:
        e("s_add_u32 m0, s%d, 0x%x" % (S_LB, SLOT[USLOT[u]] + a * 16384))
        if a: e("s_add_u32 s%d, s%d, 0x4000" % (S_XS, S_TB + u))
        else: e("s_nop 0")
    s = S_XS if a else S_TB + u
    vx[u] = vmem("buffer_load_dwordx4 v%d, s[%d:%d], s%d offen offset:%d %s lds" % (V_XOFF + i, SX, SX + 3, s, i * 1024, XF if u < opts["xfn"] else ""))
def xdma_t(u): return [lambda a=a, i=i: xdma1(u, a, i) for a in range(2) for i in range(4)]
def tok_t(tok):
    out = []
    for t in tok.split("+"):
        if t == "" or t == "none": continue
        if t[0] == "w": out.append(lambda t=t: wait(vm=vg[t[1:]] if t[1] != "U" else vx[int(t[2])]))
        elif t[0] == "g": c = int(t[1]); out += wload_t(t, RAW[c], c)
        elif len(t) == 2: out += xdma_t(int(t[1]))
        else: out += xdma_t(int(t[1]))[4 * int(t[3]):4 * int(t[3]) + 4]
    return out
lg_w = {}
def trread(c, kq, j, q):
    ks = 4 * c + kq
    r = V_W + 8 * ks + 4 * j + 2 * q
    lg_w[ks] = lds("ds_read_b64_tr_b16 v[%d:%d], v%d offset:%d" % (r, r + 1, V_TR2 if j else V_TR, kq * 8192 + q * 1024 + (c & 1) * 32768))
def tr_t(c): return [lambda kq=kq, j=j, q=q: trread(c, kq, j, q) for kq in range(4) for j in range(2) for q in range(2)]
def prune(c):
    wait(vm=vg["g%d" % c])
    if STAMP == 2 or (STAMP and c == 0): A.stamp(); stn[cur[0]].append("P%d" % c)
    for o in prune_ops(RAW[c]): e(o)
    mark("p%d" % c)

e("s_cmp_ge_u32 s2, 256")
e("s_cbranch_scc1 L_end")
if opts["map"] == 1:
    e("s_and_b32 s3, s2, 3"); e("s_lshl_b32 s3, s3, 3"); e("s_bfe_u32 s24, s2, 0x30002"); e("s_and_b32 s2, s2, 0xe0"); e("s_or_b32 s2, s2, s3"); e("s_or_b32 s2, s2, s24")
A.stamp()
e("s_load_dwordx4 s[4:7], s[0:1], 0")
e("s_load_dwordx2 s[%d:%d], s[0:1], 16" % (SB, SB + 1))
e("s_load_dwordx2 s[%d:%d], s[0:1], 24" % (SO, SO + 1))
if opts["ctouch"]:
    e("s_getpc_b64 s[%d:%d]" % (S_T1, S_T2))
    A.lab("L_pc")
    e("v_lshlrev_b32 v%d, 7, v0" % V_CT)
    e("v_min_u32 v%d, L_end-L_pc, v%d" % (V_CT, V_CT))
    e("v_mov_b32 v%d, s%d" % (V_CT + 1, S_T2))
    e("v_add_co_u32 v%d, vcc, s%d, v%d" % (V_CT, S_T1, V_CT))
    e("v_lshrrev_b32 v%d, 6, v0" % t0)
    e("v_and_b32 v%d, 63, v0" % V_L)
    e("v_addc_co_u32 v%d, vcc, 0, v%d, vcc" % (V_CT + 1, V_CT + 1))
    if opts["ctouch"] == 1: vmem("global_load_dword v%d, v[%d:%d], off" % (V_CT + 2, V_CT, V_CT + 1))
else:
    e("v_lshrrev_b32 v%d, 6, v0" % t0)
    e("v_and_b32 v%d, 63, v0" % V_L)
e("v_readfirstlane_b32 s%d, v%d" % (S_WAVE, t0))
e("s_lshr_b32 s%d, s2, 3" % S_T1)
e("s_and_b32 s%d, s%d, 3" % (S_T2, S_T1))
e("v_and_b32 v%d, 15, v%d" % (t0, V_L))
e("v_lshrrev_b32 v%d, 4, v%d" % (t1, V_L))
e("s_lshl_b32 s%d, s%d, 8" % (S_N4B, S_T2))
e("s_and_b32 s%d, s%d, 3" % (S_NQ, S_WAVE))
e("s_lshr_b32 s%d, s%d, 2" % (S_MH, S_WAVE))
e("s_lshl_b32 s%d, s%d, 2" % (S_T0, S_NQ))
e("s_add_u32 s%d, s%d, s%d" % (S_T0, S_T0, S_MH))
e("s_lshl_b32 s%d, s%d, 1" % (S_T0, S_T0))
e("v_and_b32 v%d, 2, v%d" % (t5, t1))
e("v_add_u32 v%d, v%d, v%d" % (t5, t5, t1))
e("v_add_u32 v%d, s%d, v%d" % (t5, S_T0, t5))
e("v_lshlrev_b32 v%d, 12, v%d" % (V_WOFF, t5))
e("v_lshl_add_u32 v%d, v%d, 4, v%d" % (V_WOFF, t0, V_WOFF))
e("v_add_u32 v%d, s%d, v%d" % (V_WOFF, S_N4B, V_WOFF))
e("s_lshr_b32 s%d, s%d, 2" % (S_T1, S_T1))
if opts["krot"]: e("s_and_b32 s%d, s%d, %d" % (S_WS, S_T1, opts["krot"]))
else: e("s_mov_b32 s%d, 0" % S_WS)
e("s_lshl_b32 s%d, s%d, 17" % (S_CH, S_WS))
for c in range(1, 4): e("s_xor_b32 s%d, s%d, 0x%x" % (S_CH + c, S_CH, c << 17))
e("s_mov_b32 s%d, 0x%x" % (SW + 2, 512 * 1024))
e("s_mov_b32 s%d, 0x00020000" % (SW + 3))
def pk(u): return sum(x << (4 * i) for i, x in enumerate(u))
e("s_mov_b32 s%d, 0x%x" % (S_LB, pk(UO[0])))
for q in range(1, 4):
    if UO[q] == UO[0]: continue
    e("s_cmp_eq_u32 s%d, %d" % (S_T2, q))
    e("s_cselect_b32 s%d, 0x%x, s%d" % (S_LB, pk(UO[q]), S_LB))
e("s_and_b32 s%d, s2, 7" % S_T0)
e("s_lshl_b32 s%d, s%d, 3" % (S_T1, S_T1))
e("s_add_u32 s%d, s%d, s%d" % (S_T1, S_T1, S_T0))
e("s_lshl_b32 s%d, s%d, 3" % (S_T1, S_T1))
e("s_waitcnt lgkmcnt(0)")
e("s_mov_b32 s%d, s6" % SW)
e("s_mov_b32 s%d, s7" % (SW + 1))
A.stamp()
for tok in opts["ci"].split("+"):
    if tok == "bar":
        if opts["ctouch"] == 2: vmem("global_load_dword v%d, v[%d:%d], off" % (V_CT + 2, V_CT, V_CT + 1))
        e("s_barrier")
    else: run(wload_t(tok, RAW[int(tok[1])], int(tok[1])))
e("s_mov_b32 s%d, s4" % SX)
e("s_mov_b32 s%d, s5" % (SX + 1))
for d, nb in ((SX, 16384 * 1024), (SO, 16384 * 1024), (SB, 1024)):
    e("s_mov_b32 s%d, 0x%x" % (d + 2, nb))
    e("s_mov_b32 s%d, 0x00020000" % (d + 3))
for t in range(8):
    e("s_bfe_u32 s%d, s%d, 0x%x" % (S_TB + t, S_LB, (3 << 16) | (4 * t)))
    e("s_add_u32 s%d, s%d, s%d" % (S_TB + t, S_TB + t, S_T1))
    e("s_lshl_b32 s%d, s%d, 15" % (S_TB + t, S_TB + t))
e("s_lshl_b32 s%d, s%d, 12" % (S_LB, S_NQ))
e("s_lshl_b32 s%d, s%d, 4" % (S_WS, S_WS))
e("s_lshl_b32 s%d, s%d, 2" % (S_T0, S_NQ))
e("s_or_b32 s%d, s%d, s%d" % (S_T0, S_T0, S_WS))
e("v_xor_b32 v%d, s%d, v%d" % (t2, S_T0, V_L))
e("v_lshlrev_b32 v%d, 4, v%d" % (t2, t2))
e("v_add_u32 v%d, s%d, v%d" % (V_XOFF, S_LB, t2))
for i in range(1, 4): e("v_xor_b32 v%d, %d, v%d" % (V_XOFF + i, 16 * i, V_XOFF))
e("v_lshlrev_b32 v%d, 10, v%d" % (t3, t5))
e("v_lshl_add_u32 v%d, v%d, 4, v%d" % (t3, t0, t3))
e("v_add_u32 v%d, 0x%x, v%d" % (V_WW, SLOT[3], t3))
for i in range(1, 4):
    e("v_xor_b32 v%d, %d, v%d" % (V_WW + i, 64 * i, V_WW))
e("v_mov_b32 v%d, 0x80008000" % V_C8)
e("v_xor_b32 v%d, v%d, v%d" % (t2, t1, t0))
e("v_lshlrev_b32 v%d, 4, v%d" % (t2, t2))
e("v_lshl_add_u32 v%d, v%d, 10, v%d" % (V_XA, t0, t2))
for q in range(1, 4): e("v_xor_b32 v%d, %d, v%d" % (V_XA + q, 64 * q, V_XA))
e("v_lshrrev_b32 v%d, 2, v%d" % (t2, t0))
e("v_lshl_add_u32 v%d, v%d, 3, v%d" % (t4, t1, t2))
e("v_lshlrev_b32 v%d, 8, v%d" % (V_TR, t4))
e("v_xor_b32 v%d, s%d, v%d" % (t4, S_NQ, t2))
e("v_lshl_add_u32 v%d, v%d, 6, v%d" % (V_TR, t4, V_TR))
e("v_and_b32 v%d, 3, v%d" % (t4, V_L))
e("v_lshl_add_u32 v%d, v%d, 4, v%d" % (V_TR, t4, V_TR))
e("v_and_b32 v%d, 1, v%d" % (t3, t1))
e("v_lshl_add_u32 v%d, v%d, 3, v%d" % (V_TR, t3, V_TR))
e("v_add_u32 v%d, 0x%x, v%d" % (V_TR, SLOT[3], V_TR))
e("v_xor_b32 v%d, 8, v%d" % (V_TR2, V_TR))
e("s_lshl_b32 s%d, s%d, 6" % (S_T0, S_NQ))
e("s_add_u32 s%d, s%d, s%d" % (S_T0, S_T0, S_N4B))
e("v_lshlrev_b32 v%d, 4, v%d" % (t2, t2))
e("v_add_u32 v%d, s%d, v%d" % (t2, S_T0, t2))
e("v_lshl_add_u32 v%d, v%d, 1, v%d" % (V_BOFF, t4, t2))
e("v_and_b32 v%d, 1, v%d" % (t3, V_L))
e("v_lshl_add_u32 v%d, v%d, 3, v%d" % (t2, t3, t2))
e("v_and_b32 v%d, 2, v%d" % (t4, V_L))
e("v_lshl_add_u32 v%d, v%d, 1, v%d" % (t2, t4, t2))
e("v_lshl_add_u32 v%d, v%d, 12, v%d" % (V_OOFF, t1, t2))
e("v_sub_u32 v%d, 0, v%d" % (t3, t3))
e("v_and_b32 v%d, 0x06060606, v%d" % (t3, t3))
e("v_xor_b32 v%d, 0x05040100, v%d" % (V_SEL, t3))
e("s_cmp_lg_u32 s%d, 0" % S_MH)
e("s_cbranch_scc1 L_B")
nst0 = A.NST
fork = (dict(C.__dict__), dict(vg), dict(vx))
st = {}
def bias_ld():
    vmem("buffer_load_ushort v%d, v%d, s[%d:%d], 0 offen" % (V_BIAS, V_BOFF, SB, SB + 3))
    st["vb"] = vmem("buffer_load_ushort v%d, v%d, s[%d:%d], 0 offen offset:8" % (V_BIAS + 4, V_BOFF, SB, SB + 3))
def bias_fix():
    wait(vm=st["vb"])
    for j in range(2):
        for r in (3, 2, 1, 0): e("v_lshlrev_b32 v%d, 16, v%d" % (V_BIAS + 4 * j + r, V_BIAS + 4 * j))

def stream(seq, mid, post, start_unit, sdel):
    N = len(seq)
    lg_x = {}; mf_pos = {}
    order = []
    for u, s, ks in seq:
        if (u, s) not in order: order.append((u, s))
    acc_of = {t: V_ACC + 8 * (i % 4) for i, t in enumerate(order)}
    sub_end = {(u, s): n for n, (u, s, ks) in enumerate(seq) if ks == 15}
    done_order = sorted(sub_end, key=lambda t: sub_end[t])
    out_of = {t: V_OUT + 4 * (i % 8) for i, t in enumerate(done_order)}
    cs = [-1]
    def xread(n):
        u, s, ks = seq[n]
        q = ks & 3
        r = V_XF + 4 * (n % NXF)
        lg_x[n] = lds("ds_read_b128 v[%d:%d], v%d offset:%d" % (r, r + 3, V_XA + q, s * 16384 + (ks >> 2) * 256))
        nxt = [m for m in range(n + 1, N) if (seq[m][2] & 3) == q]
        if nxt and seq[nxt[0]][0] != u:
            d = SLOT[USLOT[seq[nxt[0]][0]]] - SLOT[USLOT[u]]
            op = "v_add_u32 v%d, 0x%x, v%d" % (V_XA + q, d, V_XA + q) if d > 0 else "v_subrev_u32 v%d, 0x%x, v%d" % (V_XA + q, -d, V_XA + q)
            mid[cs[0]].append(lambda: e(op))
    def epi_ops(t):
        d = acc_of[t]; o = out_of[t]
        def cvt(r):
            gap = len(A.out) - mf_pos[t] - 1
            if gap < 8: e("s_nop %d" % (7 - gap)); mf_pos[t] -= 8
            e("v_cvt_pk_bf16_f32 v%d, v%d, v%d" % (o + r, d + r, d + 4 + r))
        return ([lambda r=r: cvt(r) for r in range(4)]
              + [lambda r=r: e("v_mov_b32_dpp v%d, v%d quad_perm:[1,0,3,2] row_mask:0xf bank_mask:0xf" % (V_T + r, o + r)) for r in range(4)]
              + [lambda r=r: e("v_perm_b32 v%d, v%d, v%d, v%d" % (o + r, V_T + r, o + r, V_SEL)) for r in range(4)])
    def store_ops(t):
        u, s = t; o = out_of[t]
        def sto(r):
            if r == 0 and s: e("s_add_u32 s%d, s%d, 0x4000" % (S_OS, S_TB + u))
            vmem("buffer_store_dword v%d, v%d, s[%d:%d], s%d offen offset:%d %s" % (o + r, V_OOFF, SO, SO + 3, S_OS if s else S_TB + u, r * 1024, STF if done_order.index(t) < len(done_order) - opts["nl"] else opts["stl"].replace("_", " ").replace("none", "")))
        fs = [lambda r=r: sto(r) for r in range(4)]
        for f in fs: f.vm = 1
        return fs
    tail = []
    free = 0; ready = {}
    for t in done_order:
        n = max(sub_end[t] + CPOS, free)
        ops = epi_ops(t) if not opts["noepi"] else []
        for k in range(6):
            (mid[n + k] if n + k < N else tail).extend(ops[2 * k:2 * k + 2])
        free = n + 6
        nxt_use = [m for m in range(sub_end[t] + 1, N) if acc_of[seq[m][:2]] == acc_of[t]]
        assert not nxt_use or nxt_use[0] > n + 2, t
        ready[t] = n + 6
    m = sdel
    for i, t in enumerate(done_order):
        m = max(m, ready[t])
        for f in (store_ops(t) if not opts["nost"] else []):
            backlog = i + 1 < len(done_order) and ready[done_order[i + 1]] <= m
            while m < N and mid[m] and not (backlog and opts["sstep"] == 1): m += 1
            (mid[m] if m < N else tail).append(f)
            m += 1
        if i + 8 < len(done_order): assert m <= ready[done_order[i + 8]] - 6, "output ring overflow"
    def mfma(n):
        u, s, ks = seq[n]
        need = max(lg_x[n], lg_w[ks])
        if need > C.lg_done:
            for m in range(n + 1, min(N, n + WSTEP)):
                if m in lg_x: need = max(need, lg_x[m])
            wait(lg=need)
        x = V_XF + 4 * (n % NXF)
        for j in range(2):
            d = acc_of[(u, s)] + 4 * j; w_ = V_W + 8 * ks + 4 * j
            cc = V_BIAS + 4 * j if ks == 0 else d
            if not opts["nomfma"]: e("v_mfma_f32_16x16x32_bf16 v[%d:%d], v[%d:%d], v[%d:%d], v[%d:%d]" % (d, d + 3, x, x + 3, w_, w_ + 3, cc, cc + 3))
            if j == 0: run(mid[n])
        mf_pos[(u, s)] = len(A.out) - 1
    st["late"]()
    if start_unit:
        for q in range(4): e("v_add_u32 v%d, 0x%x, v%d" % (V_XA + q, SLOT[USLOT[start_unit]], V_XA + q))
    for n in range(LAG): xread(n)
    run(mid[-1])
    for n in range(N):
        cs[0] = n
        if n + LAG < N: xread(n + LAG)
        mfma(n)
        run(post[n])
    run(tail)
def finish():
    if STAMP:
        A.stamp()
        e("s_waitcnt vmcnt(0)")
        A.stamp()
        e("s_barrier")
        A.stamp_dump(S_WAVE)

cur[0] = "A"
run(tok_t(opts["ai"]))
e("s_setprio %d" % (opts["pb"] + 1))
prune(0)
e("s_setprio %d" % opts["pa"])
wwrite(0)
bias_ld()
run(tok_t(opts["a0"]))
prune(1)
for c in (1, 2):
    run(tok_t(opts["s%d" % c]))
    if c == 2 and opts["biasat"] == 1: bias_fix()
    wait(lg=C.lg)
    barrier("ab"[c - 1])
    run(tr_t(c - 1)); mark("t%d" % (c - 1))
    wwrite(c)
    run(tok_t(opts["a%d" % c]))
    if c == 2:
        if opts["biasat"] == 0: bias_fix()
        if opts["b2bar"]:
            wait(lg=lg_w[7])
            barrier("b2")
        e("s_setprio 3")
    prune(c + 1)
wwrite(3)
run(tok_t(opts["a3"]))
wait(lg=C.lg, vm=vx.get(0))
e("s_setprio %d" % opts["pm"])
barrier("c")
seq = []
NU1 = opts["nu1"]
for u in range(NU1):
    for ks in range(12):
        for s in range(2): seq.append((u, s, ks))
for u in range(NU1):
    for s in range(2):
        for ks in range(12, 16): seq.append((u, s, ks))
for u in range(NU1, 8):
    for s in range(2):
        for ks in range(16): seq.append((u, s, ks))
mid = {n: [] for n in range(-1, len(seq))}; post = {n: [] for n in range(len(seq))}
for k, t in enumerate(tr_t(2)): mid[k // opts["t2r"]].append(t)
DP = opts["dpos"]
post[(24 if NU1 == 2 else 32) - LAG - 1].append(lambda: (wait(vm=vx.get(1), lg=lg_w[11] if opts["u3e"] else None), barrier("X1")))
post[DP].append(lambda: (wait(lg=lg_w[11]), barrier("d")))
for k, t in enumerate(tr_t(3)): mid[DP + 1 + k // opts["t3r"]].append(t)
post[64 - LAG - 1].append(lambda: (wait(vm=vx.get(2)), barrier("X2")))
if opts["dsched"] == 0:
    post[64].append(lambda: barrier("e"))
    for u in range(3, 8):
        post[32 * u - LAG - 1].append(lambda u=u: barrier("Y%d" % u))
else:
    post[96 - LAG - 1].append(lambda: barrier("Y3"))
    post[opts["rpos"]].append(lambda: barrier("R"))
    post[128 - LAG - 1].append(lambda: barrier("Y4"))
    post[opts["spos"]].append(lambda: barrier("S"))
st["late"] = lambda: None
stream(seq, mid, post, 0, opts["sdel"])
finish()
e("s_endpgm")

A.lab("L_B")
cur[0] = "B"; A.NST = nst0
C.__dict__.update(fork[0]); vg.clear(); vg.update(fork[1]); vx.clear(); vx.update(fork[2])
e("s_setprio %d" % opts["pb"])
run(tok_t(opts["bi"]))
prune(0)
wwrite(0)
run(tok_t(opts["b0"]))
wait(lg=C.lg)
barrier("a")
prune(1)
wwrite(1)
run(tok_t(opts["b1"]))
wait(lg=C.lg)
barrier("b")
prune(2)
if opts["b2bar"]:
    barrier("b2")
    wwrite(2)
run(tok_t(opts["b2"]))
wait(vm=vg["g3"])
ops = prune_ops(RAW[3])
for o in ops[:opts["bcut"]]: e(o)
wait(vm=vx.get(0))
barrier("c")
if not opts["b2bar"]:
    e("s_setprio %d" % opts["pw"])
    wwrite(2)
    if opts["bcut"] >= 96: wwrite(3)
    e("s_setprio %d" % opts["pbm"])
else:
    e("s_setprio %d" % opts["pbm"])
    for o in ops[opts["bcut"]:]: e(o)
    e("s_setprio %d" % opts["pw"])
    wwrite(3)
    e("s_setprio %d" % opts["pbm"])
if NU1 == 2:
    run(tok_t(opts["b3"]))
    wait(vm=vx.get(1))
    barrier("X1")
    if opts["bcut"] < 96 and not opts["b2bar"]:
        for o in ops[opts["bcut"]:]: e(o)
        e("s_setprio %d" % opts["pw"])
        wwrite(3)
        e("s_setprio %d" % opts["pbm"])
    run(tok_t(opts["b4"]))
    if opts["u3e"]: run(xdma_t(3)[:4 * opts["u3e"]])
    wait(lg=C.lg)
    barrier("d")
else:
    run(tok_t(opts["b3"]))
    wait(lg=C.lg)
    barrier("d")
    run(tok_t(opts["b4"]))
    run(xdma_t(3)[:4 * opts["u3e"]])
    wait(vm=vx.get(1))
    barrier("X1")
def paced(ts):
    for t in ts:
        t()
        if opts["bpace"] and not opts["novmem"]: wait(vm=C.vm - opts["bpace"])
if opts["nodma"]:
    xdma_t = lambda u: []
run(xdma_t(3)[4 * opts["u3e"]:])
wait(vm=vx.get(2))
barrier("X2")
if opts["dsched"] == 0:
    barrier("e")
    paced(xdma_t(4))
    wait(vm=vx.get(3))
    barrier("Y3")
    paced(xdma_t(5))
    wait(vm=vx.get(4))
    barrier("Y4")
    paced(xdma_t(6))
    wait(vm=vx.get(5))
    barrier("Y5")
    paced(xdma_t(7))
    wait(vm=vx.get(6))
    barrier("Y6")
    wait(vm=vx.get(7))
    barrier("Y7")
else:
    run(xdma_t(4)); run(xdma_t(5))
    wait(vm=vx.get(3))
    barrier("Y3")
    run(xdma_t(6))
    barrier("R")
    run(xdma_t(7))
    wait(vm=vx.get(4))
    barrier("Y4")
    wait(vm=vx.get(7))
    barrier("S")
assert bars["A"][:len(bars["B"])] == bars["B"], (bars["A"], bars["B"])
if STAMP:
    for nm in bars["A"][len(bars["B"]):]: barrier(nm)
    finish()
A.lab("L_end")
e("s_endpgm")
sys.stderr.write("barriers: %s ; stamps %d\nA: %s\nB: %s\n" % (" ".join(bars["A"]), A.NST, "".join("%6s" % x for x in stn["A"]), "".join("%6s" % x for x in stn["B"])))
print(A.text(vgpr=256, sgpr=102 if STAMP else 48))
```

```python
import sys
from common import *

opts = dict(stamp=0, lag=7, nxf=8, wstep=2, st="nt", xf="", ctouch=1, novalu=0, nomfma=0, novmem=0, real=0,
            uo="01234567,45670123,01234567,45670123", cpos=3, krot=3, sdel=92, nost=0, noepi=0, nodma=0, nobar=0, stmid=1,
            ci="g0+bar+g1", bi="none", a0="g2+g3", b0="g2+g3", a1="U0h0", b1="U0h1", a2="none", b2="U1h1", pa=1, pb=2, dpos=36, bcut=64, dstep=2, bpace=3, s1="none", s2="none", b3="U2", b4="none", pm=2, pw=3, pbm=0, sstep=2, t2r=2, t3r=2, biasat=1, stl="nt", nl=0, a3="U1h0", b2bar=1, xfn=8, wf="", map=0, dsched=0, rpos=103, spos=135, u3e=2, nu1=2, ai="none", zb=0, zpos=7)
for a in sys.argv[1:]:
    k, v = a.split("=")
    assert k in opts, k
    opts[k] = int(v) if v.lstrip("-").isdigit() else v
STAMP = opts["stamp"]; LAG = opts["lag"]; NXF = opts["nxf"]; WSTEP = opts["wstep"]
STF = opts["st"].replace("_", " ") if opts["st"] != "none" else ""
XF = opts["xf"].replace("_", " ")
CPOS = opts["cpos"]
UO = [[int(c) for c in s] for s in opts["uo"].split(",")]
assert all(sorted(u) == list(range(8)) for u in UO) and len(UO) == 4

A = Asm(256, 512, 163840, stamp=bool(STAMP), waves=8)
e = A.e
A.REAL = bool(opts["real"])

cur = ["A"]
class Cnt:
    def reset(self): self.vm = 0; self.lg = 0; self.vm_done = 0; self.lg_done = 0
C = Cnt(); C.reset()
def vmem(s):
    if opts["novmem"] and "load" in s and (C.vm > 9 or "lds" in s): return C.vm
    e(s); C.vm += 1; return C.vm
def lds(s):
    e(s); C.lg += 1; return C.lg
def wait(vm=None, lg=None):
    parts = []
    if vm is not None and vm > C.vm_done:
        n = C.vm - vm
        assert n <= 63
        parts.append("vmcnt(%d)" % n); C.vm_done = vm
    if lg is not None and lg > C.lg_done:
        n = min(C.lg - lg, 14)
        parts.append("lgkmcnt(%d)" % n); C.lg_done = C.lg - n
    if parts: e("s_waitcnt " + " ".join(parts))
bars = {"A": [], "B": []}
def barrier(name):
    bars[cur[0]].append(name)
    if STAMP and (name in "abc" or (cur[0] == "B" and name in ("X1", "d"))): A.stamp(); stn[cur[0]].append(name)
    if not (opts["nobar"] and name not in ("a", "b", "b2", "c")): e("s_barrier    ; " + name)
    if STAMP == 1 and cur[0] == "B" and name not in "ab": A.stamp(); stn[cur[0]].append(name + "+")
stn = {"A": [], "B": []}
def mark(n):
    if STAMP == 2: A.stamp(); stn[cur[0]].append(n)
def run(ts):
    for t in ts: t()

SX, SW, SB, SO = 8, 12, 16, 20
S_WAVE, S_NQ, S_MH, S_N4B, S_LB, S_T0, S_T1, S_T2 = 24, 25, 26, 27, 28, 29, 30, 31
S_TB = 32
S_CH = 40
S_WS, S_XS, S_OS = 3, 4, 5
V_C8 = 0
V_WW = 1
V_TR = 5
V_SEL = 6; V_OOFF = 7
V_XA = 8
V_XOFF = 12
V_T = 16
V_BIAS = 24
V_XF = 32
V_OUT = 64
V_ACC = 96
V_W = 128
RAW = [224, 240, 64, 96]
V_L, V_WOFF, V_BOFF = 32, 33, 34
t0, t1, t2, t3, t4, t5 = 44, 45, 46, 47, 48, 49
V_CT = 50
V_TR2 = 95
SLOT = [0, 32768, 65536, 98304, 131072]
USLOT = [0, 1, 2, 3, 4, 0, 1, 2]
assert 32 + 4 * NXF <= 64 and LAG < NXF

def prune_ops(raw):
    s = []
    for d in range(4):
        a = [raw + 4 * i + d for i in range(4)]
        g = [V_T + i for i in range(4)]
        h1, l1, h2, l2 = [V_T + 4 + i for i in range(4)]
        for i in range(4): s.append("v_or_b32 v%d, v%d, v%d" % (g[i], V_C8, a[i]))
        s.append("v_pk_max_u16 v%d, v%d, v%d" % (h1, g[0], g[1]))
        s.append("v_pk_min_u16 v%d, v%d, v%d" % (l1, g[0], g[1]))
        s.append("v_pk_max_u16 v%d, v%d, v%d" % (h2, g[2], g[3]))
        s.append("v_pk_min_u16 v%d, v%d, v%d" % (l2, g[2], g[3]))
        s.append("v_pk_min_u16 v%d, v%d, v%d" % (h1, h1, h2))
        s.append("v_pk_max_u16 v%d, v%d, v%d" % (l1, l1, l2))
        s.append("v_pk_max_u16 v%d, v%d, v%d" % (h1, h1, l1))
        s.append("v_xor_b32 v%d, v%d, v%d" % (h1, V_C8, h1))
        for i in range(4): s.append("v_sub_u32 v%d, v%d, v%d" % (g[i], g[i], h1))
        for i in range(4): s.append("v_pk_ashrrev_i16 v%d, 15, v%d op_sel_hi:[0,1]" % (g[i], g[i]))
        for i in range(4): s.append("v_and_b32 v%d, v%d, v%d" % (a[i], g[i], a[i]))
    if opts["novalu"]: s = ["; " + o for o in s]
    return s
vg = {}
GR = {"A": [(0, 0), (1, 0), (2, 0), (2, 1)], "B": [(0, 1), (1, 1), (3, 0), (3, 1)]}
def own_par(): return 0 if cur[0] == "A" else 1
def wload1(key, g, i):
    r = RAW[g] + 4 * i
    c, par = GR[cur[0]][g]
    so = S_CH + c; vo = V_WOFF
    if par != own_par():
        vo = V_WOFF + 2
        if i == 0: e("v_xor_b32 v%d, 0x2000, v%d" % (vo, V_WOFF))
    vg[key] = vmem("buffer_load_dwordx4 v[%d:%d], v%d, s[%d:%d], s%d offen offset:%d %s" % (r, r + 3, vo, SW, SW + 3, so, i * 1024, opts["wf"].replace("_", " ")))
def wload_t(key, raw, g): return [lambda i=i: wload1(key, g, i) for i in range(4)]
ww_base = {"A": 0, "B": 0}
def wwrite(g):
    c, par = GR[cur[0]][g]
    want = (c & 1) * 32768 + (par - own_par()) * 2048
    d = want - ww_base[cur[0]]
    if par == 1 and d or d < 0:
        for i in range(4): e("v_%s_u32 v%d, 0x%x, v%d" % ("add" if d > 0 else "subrev", V_WW + i, abs(d), V_WW + i))
        ww_base[cur[0]] = want; d = 0
    for i in range(4):
        r = RAW[g] + 4 * i
        if par == 0:
            w = lds("ds_write_b128 v%d, v[%d:%d] offset:%d" % (V_WW + i, r, r + 3, i * 256 + d))
        else:
            w = lds("ds_write2_b64 v%d, v[%d:%d], v[%d:%d] offset0:%d offset1:%d" % (V_WW + i, r, r + 1, r + 2, r + 3, i * 32 + 1, i * 32))
    mark("w%d" % g)
    return w
vx = {}
def xdma1(u, a, i):
    if i == 0:
        e("s_add_u32 m0, s%d, 0x%x" % (S_LB, SLOT[USLOT[u]] + a * 16384))
        if a: e("s_add_u32 s%d, s%d, 0x4000" % (S_XS, S_TB + u))
        else: e("s_nop 0")
    s = S_XS if a else S_TB + u
    vx[u] = vmem("buffer_load_dwordx4 v%d, s[%d:%d], s%d offen offset:%d %s lds" % (V_XOFF + i, SX, SX + 3, s, i * 1024, XF if u < opts["xfn"] else ""))
def xdma_t(u): return [lambda a=a, i=i: xdma1(u, a, i) for a in range(2) for i in range(4)]
def tok_t(tok):
    out = []
    for t in tok.split("+"):
        if t == "" or t == "none": continue
        if t[0] == "w": out.append(lambda t=t: wait(vm=vg[t[1:]] if t[1] != "U" else vx[int(t[2])]))
        elif t[0] == "g": c = int(t[1]); out += wload_t(t, RAW[c], c)
        elif len(t) == 2: out += xdma_t(int(t[1]))
        else: out += xdma_t(int(t[1]))[4 * int(t[3]):4 * int(t[3]) + 4]
    return out
lg_w = {}
def trread(c, kq, j, q):
    ks = 4 * c + kq
    r = V_W + 8 * ks + 4 * j + 2 * q
    lg_w[ks] = lds("ds_read_b64_tr_b16 v[%d:%d], v%d offset:%d" % (r, r + 1, V_TR2 if j else V_TR, kq * 8192 + q * 1024 + (c & 1) * 32768))
def tr_t(c): return [lambda kq=kq, j=j, q=q: trread(c, kq, j, q) for kq in range(4) for j in range(2) for q in range(2)]
def prune(c):
    wait(vm=vg["g%d" % c])
    if STAMP == 2 or (STAMP and c == 0): A.stamp(); stn[cur[0]].append("P%d" % c)
    for o in prune_ops(RAW[c]): e(o)
    mark("p%d" % c)

e("s_cmp_ge_u32 s2, 256")
e("s_cbranch_scc1 L_end")
if opts["map"] == 1:
    e("s_and_b32 s3, s2, 3"); e("s_lshl_b32 s3, s3, 3"); e("s_bfe_u32 s24, s2, 0x30002"); e("s_and_b32 s2, s2, 0xe0"); e("s_or_b32 s2, s2, s3"); e("s_or_b32 s2, s2, s24")
A.stamp()
e("s_load_dwordx4 s[4:7], s[0:1], 0")
e("s_load_dwordx2 s[%d:%d], s[0:1], 16" % (SB, SB + 1))
e("s_load_dwordx2 s[%d:%d], s[0:1], 24" % (SO, SO + 1))
if opts["ctouch"]:
    e("s_getpc_b64 s[%d:%d]" % (S_T1, S_T2))
    A.lab("L_pc")
    e("v_lshlrev_b32 v%d, 7, v0" % V_CT)
    e("v_min_u32 v%d, L_end-L_pc, v%d" % (V_CT, V_CT))
    e("v_mov_b32 v%d, s%d" % (V_CT + 1, S_T2))
    e("v_add_co_u32 v%d, vcc, s%d, v%d" % (V_CT, S_T1, V_CT))
    e("v_lshrrev_b32 v%d, 6, v0" % t0)
    e("v_and_b32 v%d, 63, v0" % V_L)
    e("v_addc_co_u32 v%d, vcc, 0, v%d, vcc" % (V_CT + 1, V_CT + 1))
    if opts["ctouch"] == 1: vmem("global_load_dword v%d, v[%d:%d], off" % (V_CT + 2, V_CT, V_CT + 1))
else:
    e("v_lshrrev_b32 v%d, 6, v0" % t0)
    e("v_and_b32 v%d, 63, v0" % V_L)
e("v_readfirstlane_b32 s%d, v%d" % (S_WAVE, t0))
e("s_lshr_b32 s%d, s2, 3" % S_T1)
e("s_and_b32 s%d, s%d, 3" % (S_T2, S_T1))
e("v_and_b32 v%d, 15, v%d" % (t0, V_L))
e("v_lshrrev_b32 v%d, 4, v%d" % (t1, V_L))
e("s_lshl_b32 s%d, s%d, 8" % (S_N4B, S_T2))
e("s_and_b32 s%d, s%d, 3" % (S_NQ, S_WAVE))
e("s_lshr_b32 s%d, s%d, 2" % (S_MH, S_WAVE))
e("s_lshl_b32 s%d, s%d, 2" % (S_T0, S_NQ))
e("s_add_u32 s%d, s%d, s%d" % (S_T0, S_T0, S_MH))
e("s_lshl_b32 s%d, s%d, 1" % (S_T0, S_T0))
e("v_and_b32 v%d, 2, v%d" % (t5, t1))
e("v_add_u32 v%d, v%d, v%d" % (t5, t5, t1))
e("v_add_u32 v%d, s%d, v%d" % (t5, S_T0, t5))
e("v_lshlrev_b32 v%d, 12, v%d" % (V_WOFF, t5))
e("v_lshl_add_u32 v%d, v%d, 4, v%d" % (V_WOFF, t0, V_WOFF))
e("v_add_u32 v%d, s%d, v%d" % (V_WOFF, S_N4B, V_WOFF))
e("s_lshr_b32 s%d, s%d, 2" % (S_T1, S_T1))
if opts["krot"]: e("s_and_b32 s%d, s%d, %d" % (S_WS, S_T1, opts["krot"]))
else: e("s_mov_b32 s%d, 0" % S_WS)
e("s_lshl_b32 s%d, s%d, 17" % (S_CH, S_WS))
for c in range(1, 4): e("s_xor_b32 s%d, s%d, 0x%x" % (S_CH + c, S_CH, c << 17))
e("s_mov_b32 s%d, 0x%x" % (SW + 2, 512 * 1024))
e("s_mov_b32 s%d, 0x00020000" % (SW + 3))
def pk(u): return sum(x << (4 * i) for i, x in enumerate(u))
e("s_mov_b32 s%d, 0x%x" % (S_LB, pk(UO[0])))
for q in range(1, 4):
    if UO[q] == UO[0]: continue
    e("s_cmp_eq_u32 s%d, %d" % (S_T2, q))
    e("s_cselect_b32 s%d, 0x%x, s%d" % (S_LB, pk(UO[q]), S_LB))
e("s_and_b32 s%d, s2, 7" % S_T0)
e("s_lshl_b32 s%d, s%d, 3" % (S_T1, S_T1))
e("s_add_u32 s%d, s%d, s%d" % (S_T1, S_T1, S_T0))
e("s_lshl_b32 s%d, s%d, 3" % (S_T1, S_T1))
e("s_waitcnt lgkmcnt(0)")
e("s_mov_b32 s%d, s6" % SW)
e("s_mov_b32 s%d, s7" % (SW + 1))
A.stamp()
for tok in opts["ci"].split("+"):
    if tok == "bar":
        if opts["ctouch"] == 2: vmem("global_load_dword v%d, v[%d:%d], off" % (V_CT + 2, V_CT, V_CT + 1))
        e("s_barrier")
    else: run(wload_t(tok, RAW[int(tok[1])], int(tok[1])))
e("s_mov_b32 s%d, s4" % SX)
e("s_mov_b32 s%d, s5" % (SX + 1))
for d, nb in ((SX, 16384 * 1024), (SO, 16384 * 1024), (SB, 1024)):
    e("s_mov_b32 s%d, 0x%x" % (d + 2, nb))
    e("s_mov_b32 s%d, 0x00020000" % (d + 3))
for t in range(8):
    e("s_bfe_u32 s%d, s%d, 0x%x" % (S_TB + t, S_LB, (3 << 16) | (4 * t)))
    e("s_add_u32 s%d, s%d, s%d" % (S_TB + t, S_TB + t, S_T1))
    e("s_lshl_b32 s%d, s%d, 15" % (S_TB + t, S_TB + t))
e("s_lshl_b32 s%d, s%d, 12" % (S_LB, S_NQ))
e("s_lshl_b32 s%d, s%d, 4" % (S_WS, S_WS))
e("s_lshl_b32 s%d, s%d, 2" % (S_T0, S_NQ))
e("s_or_b32 s%d, s%d, s%d" % (S_T0, S_T0, S_WS))
e("v_xor_b32 v%d, s%d, v%d" % (t2, S_T0, V_L))
e("v_lshlrev_b32 v%d, 4, v%d" % (t2, t2))
e("v_add_u32 v%d, s%d, v%d" % (V_XOFF, S_LB, t2))
for i in range(1, 4): e("v_xor_b32 v%d, %d, v%d" % (V_XOFF + i, 16 * i, V_XOFF))
e("v_lshlrev_b32 v%d, 10, v%d" % (t3, t5))
e("v_lshl_add_u32 v%d, v%d, 4, v%d" % (t3, t0, t3))
e("v_add_u32 v%d, 0x%x, v%d" % (V_WW, SLOT[3], t3))
for i in range(1, 4):
    e("v_xor_b32 v%d, %d, v%d" % (V_WW + i, 64 * i, V_WW))
e("v_mov_b32 v%d, 0x80008000" % V_C8)
e("v_xor_b32 v%d, v%d, v%d" % (t2, t1, t0))
e("v_lshlrev_b32 v%d, 4, v%d" % (t2, t2))
e("v_lshl_add_u32 v%d, v%d, 10, v%d" % (V_XA, t0, t2))
for q in range(1, 4): e("v_xor_b32 v%d, %d, v%d" % (V_XA + q, 64 * q, V_XA))
e("v_lshrrev_b32 v%d, 2, v%d" % (t2, t0))
e("v_lshl_add_u32 v%d, v%d, 3, v%d" % (t4, t1, t2))
e("v_lshlrev_b32 v%d, 8, v%d" % (V_TR, t4))
e("v_xor_b32 v%d, s%d, v%d" % (t4, S_NQ, t2))
e("v_lshl_add_u32 v%d, v%d, 6, v%d" % (V_TR, t4, V_TR))
e("v_and_b32 v%d, 3, v%d" % (t4, V_L))
e("v_lshl_add_u32 v%d, v%d, 4, v%d" % (V_TR, t4, V_TR))
e("v_and_b32 v%d, 1, v%d" % (t3, t1))
e("v_lshl_add_u32 v%d, v%d, 3, v%d" % (V_TR, t3, V_TR))
e("v_add_u32 v%d, 0x%x, v%d" % (V_TR, SLOT[3], V_TR))
e("v_xor_b32 v%d, 8, v%d" % (V_TR2, V_TR))
e("s_lshl_b32 s%d, s%d, 6" % (S_T0, S_NQ))
e("s_add_u32 s%d, s%d, s%d" % (S_T0, S_T0, S_N4B))
e("v_lshlrev_b32 v%d, 4, v%d" % (t2, t2))
e("v_add_u32 v%d, s%d, v%d" % (t2, S_T0, t2))
e("v_lshl_add_u32 v%d, v%d, 1, v%d" % (V_BOFF, t4, t2))
e("v_and_b32 v%d, 1, v%d" % (t3, V_L))
e("v_lshl_add_u32 v%d, v%d, 3, v%d" % (t2, t3, t2))
e("v_and_b32 v%d, 2, v%d" % (t4, V_L))
e("v_lshl_add_u32 v%d, v%d, 1, v%d" % (t2, t4, t2))
e("v_lshl_add_u32 v%d, v%d, 12, v%d" % (V_OOFF, t1, t2))
e("v_sub_u32 v%d, 0, v%d" % (t3, t3))
e("v_and_b32 v%d, 0x06060606, v%d" % (t3, t3))
e("v_xor_b32 v%d, 0x05040100, v%d" % (V_SEL, t3))
e("s_cmp_lg_u32 s%d, 0" % S_MH)
e("s_cbranch_scc1 L_B")
nst0 = A.NST
fork = (dict(C.__dict__), dict(vg), dict(vx))
st = {}
def bias_ld():
    vmem("buffer_load_ushort v%d, v%d, s[%d:%d], 0 offen" % (V_BIAS, V_BOFF, SB, SB + 3))
    st["vb"] = vmem("buffer_load_ushort v%d, v%d, s[%d:%d], 0 offen offset:8" % (V_BIAS + 4, V_BOFF, SB, SB + 3))
def bias_fix():
    wait(vm=st["vb"])
    for j in range(2):
        for r in (3, 2, 1, 0): e("v_lshlrev_b32 v%d, 16, v%d" % (V_BIAS + 4 * j + r, V_BIAS + 4 * j))

def stream(seq, mid, post, start_unit, sdel):
    N = len(seq)
    lg_x = {}; mf_pos = {}
    order = []
    for u, s, ks in seq:
        if (u, s) not in order: order.append((u, s))
    acc_of = {t: V_ACC + 8 * (i % 4) for i, t in enumerate(order)}
    sub_end = {(u, s): n for n, (u, s, ks) in enumerate(seq) if ks == 15}
    done_order = sorted(sub_end, key=lambda t: sub_end[t])
    out_of = {t: V_OUT + 4 * (i % 8) for i, t in enumerate(done_order)}
    cs = [-1]
    def xread(n):
        u, s, ks = seq[n]
        q = ks & 3
        r = V_XF + 4 * (n % NXF)
        lg_x[n] = lds("ds_read_b128 v[%d:%d], v%d offset:%d" % (r, r + 3, V_XA + q, s * 16384 + (ks >> 2) * 256))
        nxt = [m for m in range(n + 1, N) if (seq[m][2] & 3) == q]
        if nxt and seq[nxt[0]][0] != u:
            d = SLOT[USLOT[seq[nxt[0]][0]]] - SLOT[USLOT[u]]
            op = "v_add_u32 v%d, 0x%x, v%d" % (V_XA + q, d, V_XA + q) if d > 0 else "v_subrev_u32 v%d, 0x%x, v%d" % (V_XA + q, -d, V_XA + q)
            mid[cs[0]].append(lambda: e(op))
    def epi_ops(t):
        d = acc_of[t]; o = out_of[t]
        def cvt(r):
            gap = len(A.out) - mf_pos[t] - 1
            if gap < 8: e("s_nop %d" % (7 - gap)); mf_pos[t] -= 8
            e("v_cvt_pk_bf16_f32 v%d, v%d, v%d" % (o + r, d + r, d + 4 + r))
        return ([lambda r=r: cvt(r) for r in range(4)]
              + [lambda r=r: e("v_mov_b32_dpp v%d, v%d quad_perm:[1,0,3,2] row_mask:0xf bank_mask:0xf" % (V_T + r, o + r)) for r in range(4)]
              + [lambda r=r: e("v_perm_b32 v%d, v%d, v%d, v%d" % (o + r, V_T + r, o + r, V_SEL)) for r in range(4)])
    def store_ops(t):
        u, s = t; o = out_of[t]
        def sto(r):
            if r == 0 and s: e("s_add_u32 s%d, s%d, 0x4000" % (S_OS, S_TB + u))
            vmem("buffer_store_dword v%d, v%d, s[%d:%d], s%d offen offset:%d %s" % (o + r, V_OOFF, SO, SO + 3, S_OS if s else S_TB + u, r * 1024, STF if done_order.index(t) < len(done_order) - opts["nl"] else opts["stl"].replace("_", " ").replace("none", "")))
        fs = [lambda r=r: sto(r) for r in range(4)]
        for f in fs: f.vm = 1
        return fs
    tail = []
    free = 0; ready = {}
    for t in done_order:
        n = max(sub_end[t] + CPOS, free)
        ops = epi_ops(t) if not opts["noepi"] else []
        for k in range(6):
            (mid[n + k] if n + k < N else tail).extend(ops[2 * k:2 * k + 2])
        free = n + 6
        nxt_use = [m for m in range(sub_end[t] + 1, N) if acc_of[seq[m][:2]] == acc_of[t]]
        assert not nxt_use or nxt_use[0] > n + 2, t
        ready[t] = n + 6
    m = sdel
    for i, t in enumerate(done_order):
        m = max(m, ready[t])
        for f in (store_ops(t) if not opts["nost"] else []):
            backlog = i + 1 < len(done_order) and ready[done_order[i + 1]] <= m
            while m < N and mid[m] and not (backlog and opts["sstep"] == 1): m += 1
            (mid[m] if m < N else tail).append(f)
            m += 1
        if i + 8 < len(done_order): assert m <= ready[done_order[i + 8]] - 6, "output ring overflow"
    def mfma(n):
        u, s, ks = seq[n]
        need = max(lg_x[n], lg_w[ks])
        if need > C.lg_done:
            for m in range(n + 1, min(N, n + WSTEP)):
                if m in lg_x: need = max(need, lg_x[m])
            wait(lg=need)
        x = V_XF + 4 * (n % NXF)
        for j in range(2):
            d = acc_of[(u, s)] + 4 * j; w_ = V_W + 8 * ks + 4 * j
            cc = V_BIAS + 4 * j if ks == 0 else d
            if not opts["nomfma"]: e("v_mfma_f32_16x16x32_bf16 v[%d:%d], v[%d:%d], v[%d:%d], v[%d:%d]" % (d, d + 3, x, x + 3, w_, w_ + 3, cc, cc + 3))
            if j == 0: run(mid[n])
        mf_pos[(u, s)] = len(A.out) - 1
    st["late"]()
    if start_unit:
        for q in range(4): e("v_add_u32 v%d, 0x%x, v%d" % (V_XA + q, SLOT[USLOT[start_unit]], V_XA + q))
    for n in range(LAG): xread(n)
    run(mid[-1])
    for n in range(N):
        cs[0] = n
        if n + LAG < N: xread(n + LAG)
        mfma(n)
        run(post[n])
    if opts["zb"] == 2:
        k = [i for i, f in enumerate(tail) if getattr(f, "vm", 0)][0]
        tail.insert(k, lambda: barrier("T"))
    run(tail)
def finish():
    if STAMP:
        A.stamp()
        e("s_waitcnt vmcnt(0)")
        A.stamp()
        e("s_barrier")
        A.stamp_dump(S_WAVE)

cur[0] = "A"
run(tok_t(opts["ai"]))
e("s_setprio %d" % (opts["pb"] + 1))
prune(0)
e("s_setprio %d" % opts["pa"])
wwrite(0)
bias_ld()
run(tok_t(opts["a0"]))
prune(1)
for c in (1, 2):
    run(tok_t(opts["s%d" % c]))
    if c == 2 and opts["biasat"] == 1: bias_fix()
    wait(lg=C.lg)
    barrier("ab"[c - 1])
    run(tr_t(c - 1)); mark("t%d" % (c - 1))
    wwrite(c)
    run(tok_t(opts["a%d" % c]))
    if c == 2:
        if opts["biasat"] == 0: bias_fix()
        if opts["b2bar"]:
            wait(lg=lg_w[7])
            barrier("b2")
        e("s_setprio 3")
    prune(c + 1)
wwrite(3)
run(tok_t(opts["a3"]))
wait(lg=C.lg, vm=vx.get(0))
e("s_setprio %d" % opts["pm"])
barrier("c")
seq = []
NU1 = opts["nu1"]
for u in range(NU1):
    for ks in range(12):
        for s in range(2): seq.append((u, s, ks))
for u in range(NU1):
    for s in range(2):
        for ks in range(12, 16): seq.append((u, s, ks))
for u in range(NU1, 8):
    for s in range(2):
        for ks in range(16): seq.append((u, s, ks))
mid = {n: [] for n in range(-1, len(seq))}; post = {n: [] for n in range(len(seq))}
for k, t in enumerate(tr_t(2)): mid[k // opts["t2r"]].append(t)
DP = opts["dpos"]
post[(24 if NU1 == 2 else 32) - LAG - 1].append(lambda: (wait(vm=vx.get(1), lg=lg_w[11] if opts["u3e"] else None), barrier("X1")))
post[DP].append(lambda: (wait(lg=lg_w[11]), barrier("d")))
for k, t in enumerate(tr_t(3)): mid[DP + 1 + k // opts["t3r"]].append(t)
post[64 - LAG - 1].append(lambda: (wait(vm=vx.get(2)), barrier("X2")))
if opts["dsched"] == 0:
    post[64].append(lambda: barrier("e"))
    for u in range(3, 8):
        post[32 * u - LAG - 1].append(lambda u=u: barrier("Y%d" % u))
        if opts["zb"]: post[32 * u + opts["zpos"]].append(lambda u=u: barrier("Z%d" % u))
    if opts["zb"]: post[32 * 8 - LAG - 1].append(lambda: barrier("Y8"))
else:
    post[96 - LAG - 1].append(lambda: barrier("Y3"))
    post[opts["rpos"]].append(lambda: barrier("R"))
    post[128 - LAG - 1].append(lambda: barrier("Y4"))
    post[opts["spos"]].append(lambda: barrier("S"))
st["late"] = lambda: None
stream(seq, mid, post, 0, opts["sdel"])
finish()
e("s_endpgm")

A.lab("L_B")
cur[0] = "B"; A.NST = nst0
C.__dict__.update(fork[0]); vg.clear(); vg.update(fork[1]); vx.clear(); vx.update(fork[2])
e("s_setprio %d" % opts["pb"])
run(tok_t(opts["bi"]))
prune(0)
wwrite(0)
run(tok_t(opts["b0"]))
wait(lg=C.lg)
barrier("a")
prune(1)
wwrite(1)
run(tok_t(opts["b1"]))
wait(lg=C.lg)
barrier("b")
prune(2)
if opts["b2bar"]:
    barrier("b2")
    wwrite(2)
run(tok_t(opts["b2"]))
wait(vm=vg["g3"])
ops = prune_ops(RAW[3])
for o in ops[:opts["bcut"]]: e(o)
wait(vm=vx.get(0))
barrier("c")
if not opts["b2bar"]:
    e("s_setprio %d" % opts["pw"])
    wwrite(2)
    if opts["bcut"] >= 96: wwrite(3)
    e("s_setprio %d" % opts["pbm"])
else:
    e("s_setprio %d" % opts["pbm"])
    for o in ops[opts["bcut"]:]: e(o)
    e("s_setprio %d" % opts["pw"])
    wwrite(3)
    e("s_setprio %d" % opts["pbm"])
if NU1 == 2:
    run(tok_t(opts["b3"]))
    wait(vm=vx.get(1))
    barrier("X1")
    if opts["bcut"] < 96 and not opts["b2bar"]:
        for o in ops[opts["bcut"]:]: e(o)
        e("s_setprio %d" % opts["pw"])
        wwrite(3)
        e("s_setprio %d" % opts["pbm"])
    run(tok_t(opts["b4"]))
    if opts["u3e"]: run(xdma_t(3)[:4 * opts["u3e"]])
    wait(lg=C.lg)
    barrier("d")
else:
    run(tok_t(opts["b3"]))
    wait(lg=C.lg)
    barrier("d")
    run(tok_t(opts["b4"]))
    run(xdma_t(3)[:4 * opts["u3e"]])
    wait(vm=vx.get(1))
    barrier("X1")
def paced(ts):
    for t in ts:
        t()
        if opts["bpace"] and not opts["novmem"]: wait(vm=C.vm - opts["bpace"])
if opts["nodma"]:
    xdma_t = lambda u: []
run(xdma_t(3)[4 * opts["u3e"]:])
wait(vm=vx.get(2))
barrier("X2")
if opts["dsched"] == 0:
    barrier("e")
    paced(xdma_t(4))
    wait(vm=vx.get(3))
    barrier("Y3")
    for u in range(4, 8):
        xs = xdma_t(u + 1) if u < 7 else []
        if opts["zb"]:
            paced(xs[:4]); barrier("Z%d" % (u - 1)); paced(xs[4:])
        else: paced(xs)
        wait(vm=vx.get(u))
        barrier("Y%d" % u)
else:
    run(xdma_t(4)); run(xdma_t(5))
    wait(vm=vx.get(3))
    barrier("Y3")
    run(xdma_t(6))
    barrier("R")
    run(xdma_t(7))
    wait(vm=vx.get(4))
    barrier("Y4")
    wait(vm=vx.get(7))
    barrier("S")
assert bars["A"][:len(bars["B"])] == bars["B"], (bars["A"], bars["B"])
if STAMP:
    for nm in bars["A"][len(bars["B"]):]: barrier(nm)
    finish()
A.lab("L_end")
e("s_endpgm")
sys.stderr.write("barriers: %s ; stamps %d\nA: %s\nB: %s\n" % (" ".join(bars["A"]), A.NST, "".join("%6s" % x for x in stn["A"]), "".join("%6s" % x for x in stn["B"])))
print(A.text(vgpr=256, sgpr=102 if STAMP else 48))
```
